```python
import torch

def _softmax(x, axis=-1):
    return torch.softmax(x, dim=axis)
def _gelu(x):
    return torch.nn.functional.gelu(x, approximate="tanh")
def _silu(x):
    return torch.nn.functional.silu(x)
def _sigmoid(x):
    return torch.sigmoid(x)
def _layernorm(x, axis=-1, eps=1e-5):
    m = x.mean(dim=axis, keepdim=True)
    v = x.var(dim=axis, keepdim=True, unbiased=False)
    return (x - m) / torch.sqrt(v + eps)
def _scatter_add(tgt, idx, src, axis=0):
    return tgt.clone().index_add_(axis, idx, src)
def _segment_sum(src, seg, n):
    out = torch.zeros((n,) + src.shape[1:], dtype=src.dtype)
    return out.index_add_(0, seg, src)
def _pad(x, pw):
    flat = tuple(v for pair in reversed(pw) for v in pair)
    return torch.nn.functional.pad(x, flat)

kernel_name = 'sequential_preLN__compressed_kv_cla__glu_gated_reglu__prompt'

def setup_inputs():

    _w = (lambda a: (lambda t: t.to(torch.bfloat16) if t.is_floating_point() else t)(torch.as_tensor(a)))
    def _A_setup():
        B, H, Sq, Sk, D, M = 1, 32, 2048, 2048, 128, 512
        Dc = 4 * D
        return {
            "x": _w((lambda *s: torch.randn(*s, dtype=torch.bfloat16) * 0.05)(B, Sq, M)),
            "c_kv": _w((lambda *s: torch.randn(*s, dtype=torch.bfloat16) * 0.4)(B, Sk, Dc)),
            "w_q": _w((lambda *s: torch.randn(*s, dtype=torch.bfloat16) * 1.6)(M, H, D) * (M ** -0.5)),
            "w_uk": _w((lambda *s: torch.randn(*s, dtype=torch.bfloat16) * 1.6)(Dc, H, D) * (Dc ** -0.5)),
            "w_uv": _w((lambda *s: torch.randn(*s, dtype=torch.bfloat16) * 0.4)(Dc, H, D) * (Dc ** -0.5)),
            "w_o": _w((lambda *s: torch.randn(*s, dtype=torch.bfloat16) * 0.4)(H, D, M) * ((H * D) ** -0.5)),
        }
    _A_in = _A_setup()

    def _B_setup():
        B, S, D, F = 1, 2048, 512, 1376
        return {
            "x": _w((lambda *s: torch.randn(*s, dtype=torch.bfloat16) * 0.05)(B, S, D)),
            "W_gate": _w((lambda *s: torch.randn(*s, dtype=torch.bfloat16) * 0.2)(D, F) * (2.0 / D) ** 0.5),
            "W_up": _w((lambda *s: torch.randn(*s, dtype=torch.bfloat16) * 0.2)(D, F) * (2.0 / D) ** 0.5),
            "W_down": _w((lambda *s: torch.randn(*s, dtype=torch.bfloat16) * 0.2)(F, D) * (1.0 / F) ** 0.5),
        }
    _B_in = _B_setup()

    return {
        "A_x": _A_in["x"],
        "A_c_kv": _A_in["c_kv"],
        "A_w_q": _A_in["w_q"],
        "A_w_uk": _A_in["w_uk"],
        "A_w_uv": _A_in["w_uv"],
        "A_w_o": _A_in["w_o"],
        "B_x": _B_in["x"],
        "B_W_gate": _B_in["W_gate"],
        "B_W_up": _B_in["W_up"],
        "B_W_down": _B_in["W_down"],
    }

def reference(A_x, A_c_kv, A_w_q, A_w_uk, A_w_uv, A_w_o, B_x, B_W_gate, B_W_up, B_W_down):
    def _A_ref(x, c_kv, w_q, w_uk, w_uv, w_o):
        B, Sq, M = x.shape[0], x.shape[1], x.shape[2]
        Sk = c_kv.shape[1]
        H, D = w_q.shape[1], w_q.shape[2]
        q = torch.einsum("bqm,mhd->bhqd", x, w_q)
        k = torch.einsum("bkc,chd->bhkd", c_kv, w_uk)
        v = torch.einsum("bkc,chd->bhkd", c_kv, w_uv)
        scores = torch.einsum("bhqd,bhkd->bhqk", q, k) * (D ** -0.5)
        off = Sk - Sq
        qi = torch.arange(Sq)[:, None]
        kj = torch.arange(Sk)[None, :]
        cmask = kj <= (qi + off)
        scores = torch.where(cmask[None, None], scores, -1e9)
        p = _softmax(scores, axis=-1)
        ctx = torch.einsum("bhqk,bhkd->bhqd", p, v)
        return torch.einsum("bhqd,hdm->bqm", ctx, w_o)

    def _B_ref(x, W_gate, W_up, W_down):
        gate = torch.einsum("bsd,df->bsf", x, W_gate)
        up = torch.einsum("bsd,df->bsf", x, W_up)
        gate = gate * (lambda x, dt: x.to(dt))(gate > 0, gate.dtype)
        h = gate * up
        return torch.einsum("bsf,fd->bsd", h, W_down)

    x = A_x
    h = x + _A_ref(_layernorm(x, axis=-1), A_c_kv, A_w_q, A_w_uk, A_w_uv, A_w_o)
    h2 = h + _B_ref(_layernorm(h, axis=-1), B_W_gate, B_W_up, B_W_down)
    return h2
```

```python
XN_OFF   = 0x0000000
KV_OFF   = 0x0200000
CTX_OFF  = 0x2200000
HF_OFF   = 0x3200000
ST_OFF   = 0x3400000
HP_OFF   = 0x3500000
WS_SIZE  = 0x10000000
ARG = dict(x=0, ckv=8, wq=16, wuk=24, wuv=32, wo=40, bx=48, wg=56, wu=64, wd=72, out=80, dbg=88, ws=96)

def srd(k, dst, ptr_lo, nbytes):
    k.e(f"s_mov_b32 s{dst}, s{ptr_lo}")
    k.e(f"s_mov_b32 s{dst+1}, s{ptr_lo+1}")
    k.e(f"s_mov_b32 s{dst+2}, {hex(nbytes)}")
    k.e(f"s_mov_b32 s{dst+3}, 0x00020000")

def kernel_text(k, name, nvgpr, accum, nsgpr=102):
    s = f""".text
.globl {name}
.p2align 8
.type {name},@function
{name}:
""" + k.text() + f""".section .rodata,"a"
.p2align 6
.amdhsa_kernel {name}
  .amdhsa_next_free_vgpr {nvgpr}
  .amdhsa_next_free_sgpr {nsgpr}
  .amdhsa_accum_offset {accum}
  .amdhsa_group_segment_fixed_size 0
  .amdhsa_kernarg_size 104
  .amdhsa_user_sgpr_count 2
  .amdhsa_user_sgpr_kernarg_segment_ptr 1
  .amdhsa_system_sgpr_workgroup_id_x 1
  .amdhsa_float_denorm_mode_32 3
.end_amdhsa_kernel
"""
    return s

def stamp(k, slot, prof, stmp=90):
    pass
```

```python
import re

class K:
    def __init__(self, name):
        self.name = name
        self.lines = []
        self.vm = []
        self.lg = []
        self.uid = 0
    def e(self, s):
        for ln in s.split("\n"):
            ln = ln.strip()
            if ln: self.lines.append(ln)
    def label(self, n): self.lines.append(n + ":")
    def vmem(self, s, tag=None):
        self.lines.append(s); self.vm.append(tag)
    def lds(self, s, tag=None):
        self.lines.append(s); self.lg.append(tag)
    def _cnt(self, lst, tags, mx):
        if not isinstance(tags, (list, set)): tags = [tags]
        idx = -1
        for i, t in enumerate(lst):
            if t in tags: idx = i
        if idx < 0: return None
        return min(len(lst) - 1 - idx, mx)
    def wait_vm(self, tags):
        n = self._cnt(self.vm, tags, 63)
        assert n is not None, ("no vm op with tag", tags)
        self.e(f"s_waitcnt vmcnt({n})")
    def wait_lg(self, tags):
        n = self._cnt(self.lg, tags, 15)
        assert n is not None, ("no lds op with tag", tags)
        self.e(f"s_waitcnt lgkmcnt({n})")
    def wait_both(self, vtags, ltags):
        n = self._cnt(self.vm, vtags, 63); m = self._cnt(self.lg, ltags, 15)
        self.e(f"s_waitcnt vmcnt({n}) lgkmcnt({m})")
    def item(self, it):
        if isinstance(it, str): self.e(it); return
        k = it[0]
        if k == 'vm': self.vmem(it[1], it[2] if len(it) > 2 else None)
        elif k == 'lg': self.lds(it[1], it[2] if len(it) > 2 else None)
        elif k == 'wvm': self.wait_vm(it[1])
        elif k == 'wlg': self.wait_lg(it[1])
        elif k == 'fn': it[1]()
        else: raise ValueError(it)
    def items(self, its):
        for it in its: self.item(it)
    def text(self): return "\n".join(self.lines) + "\n"

def vr(base, n=1, f='v'):
    return f"{f}{base}" if n == 1 else f"{f}[{base}:{base+n-1}]"
def ar(base, n=1): return vr(base, n, 'a')
def sr(base, n=1): return vr(base, n, 's')

_reg = re.compile(r'^(-|\|)?([vas])(\d+|\[(\d+):(\d+)\])')
def parse_regs(tok):
    tok = tok.strip()
    t = tok.lstrip('-').strip('|')
    if t.startswith('abs(') : t = t[4:-1]
    if t in ('vcc',): return [('s', 106), ('s', 107)]
    if t == 'vcc_lo': return [('s', 106)]
    if t == 'vcc_hi': return [('s', 107)]
    if t == 'exec': return [('s', 126), ('s', 127)]
    if t == 'm0': return [('s', 124)]
    m = re.match(r'^([vas])(\d+)$', t)
    if m: return [(m.group(1), int(m.group(2)))]
    m = re.match(r'^([vas])\[(\d+):(\d+)\]$', t)
    if m: return [(m.group(1), i) for i in range(int(m.group(2)), int(m.group(3)) + 1)]
    return []
def split_ops(s):
    ops = []; depth = 0; cur = ""
    for ch in s:
        if ch == '[': depth += 1
        if ch == ']': depth -= 1
        if ch == ',' and depth == 0: ops.append(cur.strip()); cur = ""
        else: cur += ch
    if cur.strip(): ops.append(cur.strip())
    return ops
TRANS = ('v_exp_f32', 'v_log_f32', 'v_rcp_f32', 'v_rsq_f32', 'v_sqrt_f32', 'v_sin_f32', 'v_cos_f32')
class I: pass
def decode(line):
    line = line.split(';')[0].strip()
    if not line or line.endswith(':') or line.startswith('.'): return None
    parts = line.split(None, 1)
    i = I(); i.mn = parts[0]; i.text = line
    ops = split_ops(parts[1]) if len(parts) > 1 else []
    mods = ""
    if ops:
        l = ops[-1].split()
        ops[-1] = l[0]; mods = " ".join(l[1:])
    i.ops = ops; i.mods = mods
    mn = i.mn
    i.valu = mn.startswith('v_') and not mn.startswith('v_mfma')
    i.mfma = mn.startswith('v_mfma')
    i.vmem = mn.startswith('buffer_') or mn.startswith('global_')
    i.ds = mn.startswith('ds_')
    i.salu = mn.startswith('s_')
    i.trans = any(mn.startswith(t) for t in TRANS)
    i.dpp = ('row_' in line or 'quad_perm' in line or '_dpp' in mn)
    R = [parse_regs(o) for o in ops]
    w = []; r = []
    if i.mfma:
        w = R[0]; i.a = R[1]; i.b = R[2]; i.c = R[3]; r = R[1] + R[2] + R[3]
    elif i.valu:
        if mn.startswith('v_cmp'):
            w = R[0]; r = sum(R[1:], [])
            if mn.startswith('v_cmpx'): w = w + [('s',126),('s',127)]
        elif mn.startswith('v_permlane') or mn.startswith('v_swap'):
            w = R[0] + R[1]; r = R[0] + R[1]
        elif mn.startswith(('v_add_co', 'v_sub_co', 'v_addc_co', 'v_subb_co')):
            w = R[0] + R[1]; r = sum(R[2:], [])
        elif mn.startswith(('v_fmac', 'v_dot2c', 'v_pk_fmac')):
            w = R[0]; r = sum(R, [])
        elif mn.startswith('v_nop'): pass
        else:
            w = R[0]; r = sum(R[1:], [])
            if mn.startswith('v_cndmask') and len(ops) == 3: r = r + [('s',106),('s',107)]
            if i.dpp: r = r + []
    elif i.vmem:
        if 'lds' in mods.split() :
            r = sum(R, []) + [('s',124)]
        elif mn.startswith(('buffer_store', 'global_store')):
            r = sum(R, [])
            i.stdata = R[0] if mn.startswith('buffer_store') else R[1]
            i.wide = mn.endswith('x4') or mn.endswith('x3')
        elif 'atomic' in mn:
            r = sum(R, [])
            if 'sc0' in mods.split(): w = R[0]
        elif mn.startswith(('buffer_inv','buffer_wbl2')): pass
        else:
            w = R[0]; r = sum(R[1:], [])
    elif i.ds:
        if mn.startswith('ds_write'): r = sum(R, [])
        elif mn.startswith(('ds_read', 'ds_swizzle', 'ds_bpermute', 'ds_permute')): w = R[0]; r = sum(R[1:], [])
        else: r = sum(R, [])
    elif i.salu:
        if mn.startswith(('s_cmp', 's_cbranch', 's_branch', 's_waitcnt', 's_nop', 's_barrier', 's_endpgm', 's_setprio', 's_sleep', 's_bitcmp')):
            r = sum(R, [])
            if mn in ('s_cbranch_vccnz', 's_cbranch_vccz'): r = [('s',106),('s',107)]
        else:
            w = R[0] if R else []; r = sum(R[1:], [])
            if 'saveexec' in mn: w = w + [('s',126),('s',127)]
    i.w = w; i.r = r
    return i
def states(i):
    if i.mn == 's_nop': return int(i.ops[0], 0) + 1
    return 1
def check_hazards(lines, name="", maxback=24):
    ins = []
    for ln in lines:
        d = decode(ln)
        if d is not None: ins.append(d)
    errs = []
    for n, c in enumerate(ins):
        dist = 0
        for p in range(n - 1, max(-1, n - maxback - 1), -1):
            q = ins[p]
            need = 0; why = ""
            W = set(q.w); cr = set(c.r); cw = set(c.w)
            def upd(k, s):
                nonlocal need, why
                if k > need: need = k; why = s
            if q.valu:
                vW = {x for x in W if x[0] in 'va'}; sW = {x for x in W if x[0] == 's'}
                if c.mfma and vW & cr: upd(2, "VALU->MFMA src")
                if c.mn.startswith('v_permlane') and vW & cr: upd(2, "VALU->permlane")
                if c.mn.startswith(('v_readfirstlane', 'v_readlane')) and vW & cr: upd(1, "VALU->readlane")
                if c.valu and c.dpp and vW & cr: upd(2, "VALU->DPP")
                if q.trans and c.valu and not c.trans and vW & cr: upd(1, "trans->VALU")
                if q.trans and c.mfma and vW & cr: upd(2, "trans->mfma")
                if sW:
                    if c.vmem and sW & cr: upd(5, "VALU sgpr->VMEM")
                    if c.valu and sW & cr: upd(2, "VALU sgpr->VALU")
                    if c.mn.startswith(('v_readlane','v_writelane')) and sW & cr: upd(4, "VALU sgpr->lane sel")
                if ('s',126) in W and c.mfma: upd(4, "exec->mfma")
                if 'sdwa' in q.mn or 'src0_sel' in q.text or 'dst_sel' in q.text:
                    if c.valu and vW & cr and 'dst_sel:WORD' in q.text: upd(1, "sdwa")
            if q.mfma:
                if c.mfma:
                    cc = set(c.c)
                    if W & cc:
                        if not (q.w == c.c): upd(10, "mfma D->C overlap partial")
                    if W & (set(c.a) | set(c.b)): upd(12, "mfma D->A/B")
                    if W & cw and not (q.w == c.c or q.w == c.w): upd(10, "mfma WAW partial")
                elif (c.valu or c.vmem or c.ds) and (W & (cr | cw)): upd(12, "mfma D->VALU/mem")
                if c.valu and set(q.c) & cw: upd(7, "mfma C WAR")
            if q.vmem and getattr(q, 'wide', False):
                if c.valu and set(q.stdata) & cw: upd(2, "store data WAR")
                elif set(q.stdata) & cw: upd(1, "store data WAR")
            if q.salu and ('s',124) in W and c.vmem and ('s',124) in cr: upd(1, "m0->dma")
            if need > dist:
                errs.append(f"{name}: need {need} got {dist} [{why}]: '{q.text}' -> '{c.text}'")
            dist += states(q)
            if dist >= 20: break
    return errs
```

```python
from fw import *
from common import *

import os
OPT = os.environ.get('K1OPT', '').split(',')
def gen_k1(prof=False):
    STF = '' if 'plainst' in OPT else ' sc1'
    k = K("k1")
    N = "kv_kernel"
    vL, vL16, vWr0, vWr1 = 1, 2, 3, 4
    vW = [5, 6, 7, 8]; vC = [9, 10, 11, 12]; vCr = list(range(13, 21))
    ACC = [64, 128]; WF = 192; PK = 224
    sCKV, sWUK, sWUV, sWS, sX = 4, 8, 12, 16, 20
    sW_, sH, sKB, sT, sH256, sW4096, sKV0, sKV1, sCoff, sStage, sT2 = 24, 25, 26, 27, 28, 29, 30, 31, 32, 33, 34
    sPtr = 36
    k.e(f"s_cmp_ge_u32 s2, 256")
    k.e(f"s_cbranch_scc1 L_k1_end")
    if prof: k.e("s_memrealtime s[60:61]")
    nst = [0]
    def stampt():
        if prof >= 2:
            r = 66 + 2 * nst[0]; nst[0] += 1
            k.e(f"s_memtime s[{r}:{r+1}]"); k.e("s_waitcnt lgkmcnt(0)")
    stampt()
    k.e(f"s_load_dwordx4 s[36:39], s[0:1], 0")
    k.e(f"s_load_dwordx4 s[40:43], s[0:1], 24")
    k.e(f"s_load_dwordx2 s[44:45], s[0:1], 96")
    k.e(f"v_and_b32 v{vL}, 63, v0")
    k.e(f"v_lshrrev_b32 v21, 6, v0")
    k.e(f"v_lshlrev_b32 v{vL16}, 4, v{vL}")
    k.e(f"v_readfirstlane_b32 s{sW_}, v21")
    k.e(f"s_and_b32 s{sT}, s2, 7")
    k.e(f"s_lshr_b32 s{sT2}, s2, 3")
    k.e(f"s_lshl_b32 s{sH}, s{sT}, 2")
    k.e(f"s_and_b32 s{sT}, s{sT2}, 3")
    k.e(f"s_add_u32 s{sH}, s{sH}, s{sT}")
    k.e(f"s_lshr_b32 s{sKB}, s{sT2}, 2")
    k.e(f"s_lshl_b32 s{sH256}, s{sH}, 8")
    k.e(f"s_lshl_b32 s{sW4096}, s{sW_}, 12")
    k.e(f"s_lshl_b32 s{sT}, s{sKB}, 3")
    k.e(f"s_lshl_b32 s{sT2}, s{sW_}, 1")
    k.e(f"s_add_u32 s{sT}, s{sT}, s{sT2}")
    k.e(f"s_lshl_b32 s{sCoff}, s{sT}, 15")
    k.e(f"s_lshl_b32 s{sKV0}, s{sT}, 14")
    k.e(f"s_lshl_b32 s{sT2}, s{sH}, 20")
    k.e(f"s_add_u32 s{sKV0}, s{sKV0}, s{sT2}")
    k.e(f"s_add_u32 s{sKV0}, s{sKV0}, {hex(KV_OFF)}")
    k.e(f"s_add_u32 s{sKV1}, s{sKV0}, 16384")
    k.e(f"s_mul_i32 s{sStage}, s{sW_}, 24576")
    k.e(f"s_add_u32 s{sStage}, s{sStage}, 65536")
    k.e(f"v_lshrrev_b32 v23, 5, v{vL}")
    k.e(f"v_and_b32 v24, 31, v{vL}")
    k.e(f"s_lshl_b32 s{sT}, s2, 3")
    k.e(f"s_lshl_b32 s{sT2}, s{sW_}, 1")
    k.e(f"s_add_u32 s{sT}, s{sT}, s{sT2}")
    k.e(f"v_add_u32 v25, s{sT}, v23")
    k.e(f"v_lshlrev_b32 v22, 10, v25")
    k.e(f"v_lshl_add_u32 v22, v24, 4, v22")
    k.e("s_waitcnt lgkmcnt(0)")
    srd(k, sX, 36, 2048*512*2)
    k.vmem(f"buffer_load_dwordx4 v[64:67], v22, s[{sX}:{sX+3}], 0 offen", 'x')
    k.vmem(f"buffer_load_dwordx4 v[68:71], v22, s[{sX}:{sX+3}], 0 offen offset:512", 'x')
    srd(k, sCKV, 38, 2048*512*2)
    srd(k, sWUK, 40, 512*4096*2)
    srd(k, sWUV, 42, 512*4096*2)
    srd(k, sWS, 44, WS_SIZE)
    k.e(f"v_lshrrev_b32 v26, 3, v{vL}")
    k.e(f"v_and_b32 v27, 7, v{vL}")
    k.e(f"v_lshrrev_b32 v28, 4, v{vL}")
    k.e(f"v_and_b32 v29, 1, v28")
    k.e(f"v_lshlrev_b32 v29, 2, v29")
    k.e(f"v_xor_b32 v27, v27, v29")
    k.e(f"v_lshlrev_b32 v27, 4, v27")
    k.e(f"v_lshl_add_u32 v27, v26, 13, v27")
    k.e(f"s_lshl_b32 s{sT}, s{sW_}, 18")
    k.e(f"v_add_u32 v{vW[0]}, s{sT}, v27")
    for j in range(1, 4):
        k.e(f"v_add_u32 v{vW[j]}, {hex(j*(65536-1024))}, v{vW[0]}")
    def dma_w(m):
        p, q = m // 4, m % 4
        srdw = sWUK if p < 2 else sWUV
        its = [f"s_add_u32 s{sT}, s{sH256}, {hex(q*128*8192 + (p%2)*128)}",
               f"s_add_u32 m0, s{sW4096}, {hex(q*16384)}"]
        its.append("s_nop 0")
        for j in range(4):
            off = f" offset:{j*1024}" if j else ""
            its.append(('vm', f"buffer_load_dwordx4 v{vW[j]}, s[{srdw}:{srdw+3}], s{sT} offen{off} lds", ('W', m)))
        return its
    k.e(f"v_and_b32 v29, 15, v{vL}")
    for j in range(4):
        k.e(f"v_add_u32 v30, {4*j}, v28")
        k.e(f"v_xor_b32 v30, v30, v29")
        k.e(f"v_lshlrev_b32 v30, 4, v30")
        k.e(f"v_lshl_add_u32 v30, v28, 10, v30")
        k.e(f"v_add_u32 v{vC[j]}, {j*3072}, v30")
    def dma_c(n):
        i, q, slot = n % 2, n // 2, n % 3
        its = []
        for hi in range(2):
            its.append(f"s_add_u32 s{sT2}, s{sCoff}, {hex(i*32768 + q*256 + hi*16384)}")
            its.append(f"s_add_u32 m0, s{sStage}, {hex(slot*8192 + hi*4096)}")
            its.append("s_nop 0")
            for j in range(4):
                off = f" offset:{j*1024}" if j else ""
                its.append(('vm', f"buffer_load_dwordx4 v{vC[j]}, s[{sCKV}:{sCKV+3}], s{sT2} offen{off} lds", ('C', n)))
        return its
    k.items(dma_w(0)); k.items(dma_c(0)); k.items(dma_c(1)); k.items(dma_w(1)); k.items(dma_c(2))
    k.e(f"v_lshrrev_b32 v30, 2, v29")
    k.e(f"v_lshl_add_u32 v30, v23, 3, v30")
    k.e(f"v_lshlrev_b32 v30, 7, v30")
    k.e(f"v_and_b32 v31, 1, v28")
    k.e(f"v_lshlrev_b32 v31, 1, v31")
    k.e(f"v_bfe_u32 v32, v29, 1, 1")
    k.e(f"v_add_u32 v31, v31, v32")
    k.e(f"v_lshrrev_b32 v32, 3, v29")
    k.e(f"v_lshlrev_b32 v32, 2, v32")
    k.e(f"v_xor_b32 v31, v31, v32")
    k.e(f"v_lshl_add_u32 v30, v31, 4, v30")
    k.e(f"v_and_b32 v32, 1, v29")
    k.e(f"v_lshl_add_u32 v{vWr0}, v32, 3, v30")
    k.e(f"v_xor_b32 v{vWr1}, 64, v{vWr0}")
    k.e(f"v_and_b32 v30, 15, v24")
    k.e(f"v_xor_b32 v30, v30, v23")
    k.e(f"v_lshlrev_b32 v30, 4, v30")
    k.e(f"v_lshl_add_u32 v30, v24, 8, v30")
    for j in range(8):
        k.e(f"v_xor_b32 v31, {j*32}, v30")
        k.e(f"v_add_u32 v{vCr[j]}, s{sStage}, v31")
    k.e(f"v_lshrrev_b32 v30, 5, v25")
    k.e(f"v_lshlrev_b32 v30, 15, v30")
    k.e(f"v_lshrrev_b32 v31, 1, v24")
    k.e(f"v_lshl_add_u32 v30, v31, 10, v30")
    k.e(f"v_and_b32 v31, 1, v24")
    k.e(f"v_lshlrev_b32 v31, 5, v31")
    k.e(f"v_and_b32 v32, 31, v25")
    k.e(f"v_add_u32 v31, v31, v32")
    k.e(f"v_lshl_add_u32 v33, v31, 4, v30")
    k.wait_vm('x')
    X = 72
    for j in range(8):
        k.e(f"v_lshlrev_b32 v{X+2*j}, 16, v{64+j}")
        k.e(f"v_and_b32 v{X+2*j+1}, 0xffff0000, v{64+j}")
    def allreduce(r, t):
        for rot in (8, 4, 2, 1):
            k.e("s_nop 1")
            k.e(f"v_add_f32_dpp v{r}, v{r}, v{r} row_ror:{rot} row_mask:0xf bank_mask:0xf")
        k.lds(f"ds_swizzle_b32 v{t}, v{r} offset:0x401F", 'swz')
        k.wait_lg('swz')
        k.e(f"v_add_f32 v{r}, v{r}, v{t}")
    k.e(f"v_add_f32 v34, v{X}, v{X+1}")
    for j in range(2, 16): k.e(f"v_add_f32 v34, v34, v{X+j}")
    allreduce(34, 35)
    k.e(f"v_mul_f32 v34, 0x3b000000, v34")
    k.e(f"v_sub_f32 v36, v{X}, v34")
    k.e(f"v_mul_f32 v37, v36, v36")
    for j in range(1, 16):
        k.e(f"v_sub_f32 v36, v{X+j}, v34")
        k.e(f"v_fmac_f32 v37, v36, v36")
    allreduce(37, 35)
    k.e(f"v_mul_f32 v37, 0x3b000000, v37")
    k.e(f"v_cvt_pk_bf16_f32 v34, v34, v34")
    k.e(f"v_cvt_pk_bf16_f32 v37, v37, v37")
    k.e(f"v_lshlrev_b32 v34, 16, v34")
    k.e(f"v_lshlrev_b32 v37, 16, v37")
    k.e(f"v_add_f32 v37, 0x3727c5ac, v37")
    k.e(f"v_cvt_pk_bf16_f32 v37, v37, v37")
    k.e(f"v_lshlrev_b32 v37, 16, v37")
    k.e(f"v_sqrt_f32 v37, v37")
    k.e("s_nop 0")
    k.e(f"v_cvt_pk_bf16_f32 v37, v37, v37")
    k.e(f"v_lshlrev_b32 v37, 16, v37")
    k.e(f"v_rcp_f32 v37, v37")
    for j in range(16): k.e(f"v_sub_f32 v{X+j}, v{X+j}, v34")
    for j in range(8): k.e(f"v_cvt_pk_bf16_f32 v{64+j}, v{X+2*j}, v{X+2*j+1}")
    for j in range(8):
        k.e(f"v_lshlrev_b32 v{X+2*j}, 16, v{64+j}")
        k.e(f"v_and_b32 v{X+2*j+1}, 0xffff0000, v{64+j}")
    for j in range(16): k.e(f"v_mul_f32 v{X+j}, v{X+j}, v37")
    for j in range(8): k.e(f"v_cvt_pk_bf16_f32 v{64+j}, v{X+2*j}, v{X+2*j+1}")
    k.e(f"s_mov_b32 s{sT}, {hex(XN_OFF)}")
    k.e(f"s_mov_b32 s{sT2}, {hex(XN_OFF+16384)}")
    k.vmem(f"buffer_store_dwordx4 v[64:67], v33, s[{sWS}:{sWS+3}], s{sT} offen sc1", 'xs')
    k.vmem(f"buffer_store_dwordx4 v[68:71], v33, s[{sWS}:{sWS+3}], s{sT2} offen sc1", 'xs')
    def wf(g, dt): return WF + (g % 4) * 8 + dt * 4
    def cf(i, s): return (i * 32 + s) * 4
    def wreads(g):
        m, sp = g // 8, g % 8
        base = (m % 4) * 16384 + sp * 2048
        its = []
        for dt in range(2):
            a = vWr0 if dt == 0 else vWr1
            r = wf(g, dt)
            its.append(('lg', f"ds_read_b64_tr_b16 v[{r}:{r+1}], v{a} offset:{base}", ('w', g)))
            its.append(('lg', f"ds_read_b64_tr_b16 v[{r+2}:{r+3}], v{a} offset:{base+512}", ('w', g)))
        return its
    def creads(q):
        its = []
        for sp in range(8):
            for i in range(2):
                n = 2 * q + i
                r = cf(i, 8 * q + sp)
                its.append(('lg', f"ds_read_b128 a[{r}:{r+3}], v{vCr[sp]} offset:{(n%3)*8192}", ('c', q)))
        return its
    def epilogue_items(p):
        acc = ACC[p % 2]; P = p % 2
        groups = []
        t_i = 0
        for i in range(2):
            for dt in range(2):
                a = acc + (i * 2 + dt) * 16
                dtg = 2 * P + dt
                for u in range(2):
                    pk = PK + (t_i % 4) * 4; t_i += 1
                    g = [f"v_cvt_pk_bf16_f32 v{pk+j}, v{a+8*u+2*j}, v{a+8*u+2*j+1}" for j in range(4)]
                    f = (2 * dtg + u) if p < 2 else (8 + u * 4 + dtg)
                    skv = sKV0 if i == 0 else sKV1
                    st = []
                    if f // 4:
                        st.append(f"s_add_u32 s{sT2}, s{skv}, {(f//4)*4096}"); so = sT2
                    else: so = skv
                    off = f" offset:{(f%4)*1024}" if f % 4 else ""
                    st.append(('vm', f"buffer_store_dwordx4 v[{pk}:{pk+3}], v{vL16}, s[{sWS}:{sWS+3}], s{so} offen{off}{STF}", 'st') if 'nost' not in OPT else "s_nop 0")
                    groups.append((g, st))
        return groups
    stampt()
    k.wait_vm([('W', 0), ('C', 0), ('C', 1)])
    stampt()
    k.e("s_barrier")
    k.items(creads(0))
    for g in range(3): k.items(wreads(g))
    NG = 128
    for g in range(NG):
        p, s = g // 32, g % 32
        q, sp = s // 8, s % 8
        gaps = [[], [], [], []]
        pre = []
        if (g + 3) % 8 == 0 and g + 3 < NG:
            m = (g + 3) // 8
            tags = [('W', m)]
            if m < 4: tags += [('C', 2 * m), ('C', 2 * m + 1)]
            pre.append(('wvm', tags)); pre.append("s_barrier")
        tg = [('w', g)]
        if p == 0 and sp == 0: tg.append(('c', q))
        pre.append(('wlg', tg))
        if g + 3 < NG:
            for j, it in enumerate(wreads(g + 3)): gaps[j].append(it)
        if p == 0 and (g + 3) // 8 < 4 and (g + 3) // 8 >= 1 and sp >= 5:
            qn = (g + 3) // 8
            cr = creads(qn)
            lo = (sp - 5) * 16 // 3; hi = (sp - 4) * 16 // 3
            for j, it in enumerate(cr[lo:hi]): gaps[j % 4].append(it)
        dm = []
        if (g + 3) % 8 == 0 and g + 3 < NG and (g + 3) // 8 + 2 < 16: dm = dma_w((g + 3) // 8 + 2)
        if g == 0: dm = dma_w(2)
        if p == 0 and sp == 0 and q < 3:
            dm = dm + dma_c(2 * q + 3)
        if p == 0 and sp == 1 and 2 * q + 4 < 8:
            dm = dm + dma_c(2 * q + 4)
        grps = []; j = 0
        while j < len(dm):
            grp = []
            while j < len(dm) and isinstance(dm[j], str): grp.append(dm[j]); j += 1
            if j < len(dm): grp.append(dm[j]); j += 1
            grps.append(grp)
        for j, grp in enumerate(grps): gaps[j * 4 // len(grps)] += grp
        if p >= 1 and 1 <= s <= 16:
            grp = epilogue_items(p - 1)[(s - 1) // 2]
            if (s - 1) % 2 == 0:
                gaps[1].append(grp[0][0]); gaps[3].append(grp[0][1])
            else:
                gaps[0].append(grp[0][2]); gaps[1].append(grp[0][3]); gaps[3] += grp[1]
        if s == 0 or (p == 0 and sp == 0): stampt()
        k.items(pre)
        acc = ACC[p % 2]
        n = 0
        for dt in range(2):
            for i in range(2):
                a = acc + (i * 2 + dt) * 16
                c = "0" if s == 0 else f"v[{a}:{a+15}]"
                w = f"v[{wf(g,dt)}:{wf(g,dt)+3}]"; cc = f"a[{cf(i,s)}:{cf(i,s)+3}]"
                if p < 2: k.e(f"v_mfma_f32_32x32x16_bf16 v[{a}:{a+15}], {w}, {cc}, {c}")
                else:     k.e(f"v_mfma_f32_32x32x16_bf16 v[{a}:{a+15}], {cc}, {w}, {c}")
                k.items(gaps[n]); n += 1
    stampt()
    k.e("s_nop 7"); k.e("s_nop 3")
    for grp in epilogue_items(3):
        k.items(grp[0]); k.items(grp[1])
    if prof:
        k.e("s_waitcnt vmcnt(0)")
        k.e("s_memrealtime s[62:63]")
        k.e("s_waitcnt lgkmcnt(0)")
        prof_store(k, 0, sWS, sW_)
        if prof >= 2:
            stampt()
            prof_dump(k, 0, sWS, sW_, nst[0])
    k.label("L_k1_end")
    k.e("s_endpgm")
    errs = check_hazards(k.lines, "k1")
    return k, errs

PROF_OFF = 0x8000000
def prof_store(k, kidx, sWS, sWave, lo=60, hi=62):
    k.e(f"s_lshl_b32 s64, s2, 4")
    k.e(f"s_add_u32 s64, s64, s{sWave}")
    k.e(f"s_lshl_b32 s64, s64, 3")
    k.e(f"s_add_u32 s64, s64, {hex(PROF_OFF + kidx*65536)}")
    k.e(f"v_mov_b32 v60, s{lo}")
    k.e(f"v_mov_b32 v61, s{hi}")
    k.e(f"v_mov_b32 v62, 0")
    k.e(f"buffer_store_dwordx2 v[60:61], v62, s[{sWS}:{sWS+3}], s64 offen")


def prof_dump(k, kidx, sWS, sWave, n):
    k.e(f"s_lshl_b32 s64, s2, 4")
    k.e(f"s_add_u32 s64, s64, s{sWave}")
    k.e(f"s_lshl_b32 s64, s64, 6")
    k.e(f"s_add_u32 s64, s64, {hex(PROF_OFF + 0x100000 + kidx*0x40000)}")
    k.e(f"v_mov_b32 v62, 0")
    for i in range(n):
        k.e(f"v_mov_b32 v60, s{66+2*i}")
        k.e(f"buffer_store_dword v60, v62, s[{sWS}:{sWS+3}], s64 offen offset:{4*i}")
        k.e("s_nop 1")

if __name__ == "__main__":
    k, errs = gen_k1()
    print(len(k.lines), "lines;", len(errs), "hazards")
    for e in errs[:40]: print(e)
```

```python
from fw import *
from common import *
from k1 import prof_store, prof_dump
import os, math
LDS = 163840
OPT = os.environ.get('K2OPT', '').split(',')

def gen_k2(prof=0):
    k = K("k2")
    vL16, vKa, vVa, vl, vD, vT0, vT1, vInf = 1, 2, 3, 4, 5, 6, 7, 8
    LA = [9, 10]; LB = [11, 12]
    vLT = 13
    S = [16, 32]; NEGM = 48; O = 64; Q = 128; FR = 160; P = [192, 200]; E = 208
    XN = 128; WR = 16; vQr = [224-4+i for i in range(4)]
    sWS, sWQ = 4, 8
    sWv, sWq, sH, sJ, sQT, sRem, sTt, sTn, sKVb, sT, sT2, sKs, sVs, sGrp = 12, 13, 14, 15, 16, 17, 18, 19, 20, 21, 22, 23, 24, 25
    sThr, sM0b, sCtx = 26, 27, 28
    sMask = 32
    nst = [0]
    def stampt():
        if prof >= 2:
            r = 66 + 2 * nst[0]; nst[0] += 1
            k.e(f"s_memtime s[{r}:{r+1}]"); k.e("s_waitcnt lgkmcnt(0)")
    k.e("s_cmp_ge_u32 s2, 256")
    k.e("s_cbranch_scc1 L_k2_end")
    if prof: k.e("s_memrealtime s[98:99]")
    stampt()
    k.e("s_load_dwordx2 s[36:37], s[0:1], 16")
    k.e("s_load_dwordx2 s[38:39], s[0:1], 96")
    k.e(f"v_and_b32 v14, 63, v0")
    k.e(f"v_lshrrev_b32 v15, 6, v0")
    k.e(f"v_lshlrev_b32 v{vL16}, 4, v14")
    k.e(f"v_readfirstlane_b32 s{sWv}, v15")
    k.e(f"s_and_b32 s{sT}, s2, 7")
    k.e(f"s_lshr_b32 s{sT2}, s2, 3")
    k.e(f"s_lshl_b32 s{sH}, s{sT}, 2")
    k.e(f"s_and_b32 s{sT}, s{sT2}, 3")
    k.e(f"s_add_u32 s{sH}, s{sH}, s{sT}")
    k.e(f"s_lshr_b32 s{sJ}, s{sT2}, 2")
    k.e(f"s_and_b32 s{sWq}, s{sWv}, 3")
    k.e(f"s_lshr_b32 s{sGrp}, s{sWv}, 2")
    k.e(f"s_sub_u32 s{sT}, 15, s{sJ}")
    k.e(f"s_cmp_eq_u32 s{sGrp}, 0")
    k.e(f"s_cselect_b32 s{sT2}, s{sT}, s{sJ}")
    k.e(f"s_lshl_b32 s{sQT}, s{sT2}, 2")
    k.e(f"s_add_u32 s{sQT}, s{sQT}, s{sWq}")
    k.e(f"s_add_u32 s{sTt}, s{sT}, 1")
    k.e(f"s_lshl_b32 s{sTt}, s{sTt}, 1")
    k.e(f"s_lshl_b32 s{sKVb}, s{sH}, 20")
    k.e(f"s_add_u32 s{sKVb}, s{sKVb}, {hex(KV_OFF)}")
    k.e(f"s_lshr_b32 s{sT}, s{sWq}, 1")
    k.e(f"s_lshl_b32 s{sT}, s{sT}, 14")
    k.e(f"s_add_u32 s{sKVb}, s{sKVb}, s{sT}")
    k.e(f"s_and_b32 s{sT}, s{sWq}, 1")
    k.e(f"s_lshl_b32 s{sT}, s{sT}, 12")
    k.e(f"s_add_u32 s{sKVb}, s{sKVb}, s{sT}")
    k.e(f"s_lshl_b32 s{sM0b}, s{sWq}, 12")
    k.e(f"s_lshl_b32 s{sCtx}, s{sQT}, 5")
    k.e(f"s_add_u32 s{sCtx}, s{sCtx}, s{sH}")
    k.e(f"s_lshl_b32 s{sCtx}, s{sCtx}, 13")
    k.e(f"s_add_u32 s{sCtx}, s{sCtx}, {hex(CTX_OFF)}")
    vWq = [224, 225, 226, 227]
    vWq = [2, 3, 4, 5]; vQr = [6, 7, 8, 9]
    k.e(f"v_lshrrev_b32 v10, 4, v14")
    k.e(f"v_and_b32 v11, 15, v14")
    k.e(f"v_lshlrev_b32 v12, 2, v10")
    k.e(f"v_xor_b32 v12, v12, v11")
    k.e(f"v_lshlrev_b32 v12, 4, v12")
    k.e(f"v_lshl_add_u32 v12, v10, 13, v12")
    k.e(f"s_lshl_b32 s{sT}, s{sWv}, 17")
    k.e(f"v_add_u32 v{vWq[0]}, s{sT}, v12")
    for j in range(1, 4): k.e(f"v_add_u32 v{vWq[j]}, {hex(j*(4*8192-1024))}, v{vWq[0]}")
    k.e("s_waitcnt lgkmcnt(0)")
    srd(k, sWQ, 36, 512*4096*2)
    srd(k, sWS, 38, WS_SIZE)
    CB = [131072, 65536, 98304, 131072]
    def dma_wq(n):
        its = [f"s_lshl_b32 s{sT}, s{sH}, 8",
               f"s_add_u32 s{sT}, s{sT}, {hex(n*128*8192)}",
               f"s_lshl_b32 s{sT2}, s{sWv}, 12",
               f"s_add_u32 m0, s{sT2}, {hex(CB[n])}", "s_nop 0"]
        for j in range(4):
            off = f" offset:{j*1024}" if j else ""
            its.append(('vm', f"buffer_load_dwordx4 v{vWq[j]}, s[{sWQ}:{sWQ+3}], s{sT} offen{off} lds", ('WQ', n)))
        return its
    k.items(dma_wq(0))
    k.e(f"s_lshl_b32 s{sT}, s{sQT}, 15")
    k.e(f"s_add_u32 s{sT}, s{sT}, {hex(XN_OFF)}")
    def xn_loads(lo, hi):
        for s in range(lo, hi):
            if s % 4 == 0 and s: k.e(f"s_add_u32 s{sT}, s{sT}, 4096")
            off = f" offset:{(s%4)*1024}" if s % 4 else ""
            k.vmem(f"buffer_load_dwordx4 v[{XN+4*s}:{XN+4*s+3}], v{vL16}, s[{sWS}:{sWS+3}], s{sT} offen{off}", ('xn', s // 8))
    xn_loads(0, 8)
    k.e(f"s_mov_b32 s30, s{sT}")
    k.items(dma_wq(1))
    k.e(f"s_mov_b32 s{sT}, s30")
    xn_loads(8, 16)
    k.e(f"s_mov_b32 s30, s{sT}")
    k.items(dma_wq(2))
    k.e(f"s_mov_b32 s{sT}, s30")
    xn_loads(16, 32)
    def dma_k(tsg, its):
        its += [f"s_and_b32 s{sT}, s{tsg}, 3", f"s_lshl_b32 s{sT}, s{sT}, 14", f"s_add_u32 m0, s{sT}, s{sM0b}",
                f"s_lshl_b32 s{sT}, s{tsg}, 15", f"s_add_u32 s{sT}, s{sT}, s{sKVb}"]
        for j in range(4):
            off = f" offset:{j*1024}" if j else ""
            its.append(('vm', f"buffer_load_dwordx4 v{vL16}, s[{sWS}:{sWS+3}], s{sT} offen{off} lds", 'K'))
    def dma_v(tsg, its):
        its += [f"s_and_b32 s{sT2}, s{tsg}, 3", f"s_lshl_b32 s{sT2}, s{sT2}, 14", f"s_add_u32 s{sT2}, s{sT2}, s{sM0b}", f"s_add_u32 m0, s{sT2}, 65536",
                f"s_lshl_b32 s{sT2}, s{tsg}, 15", f"s_add_u32 s{sT2}, s{sT2}, s{sKVb}", f"s_add_u32 s{sT2}, s{sT2}, 8192"]
        for j in range(4):
            off = f" offset:{j*1024}" if j else ""
            its.append(('vm', f"buffer_load_dwordx4 v{vL16}, s[{sWS}:{sWS+3}], s{sT2} offen{off} lds", 'V'))
    k.e(f"s_cmp_eq_u32 s{sGrp}, 0")
    k.e("s_cbranch_scc1 L_k2_nok")
    sv = list(k.vm)
    for t in range(2):
        k.e(f"s_mov_b32 s29, {t}")
        its = []; dma_k(29, its); k.items(its)
    k.label("L_k2_nok")
    k.vm = sv
    k.e(f"v_lshrrev_b32 v12, 5, v14")
    k.e(f"v_lshrrev_b32 v13, 2, v11")
    k.e(f"v_lshl_add_u32 v15, v12, 3, v13")
    k.e(f"v_lshlrev_b32 v15, 8, v15")
    k.e(f"v_and_b32 v10, 1, v10")
    k.e(f"v_lshlrev_b32 v10, 1, v10")
    k.e(f"v_bfe_u32 v{vQr[1]}, v11, 1, 1")
    k.e(f"v_add_u32 v10, v10, v{vQr[1]}")
    k.e(f"v_lshlrev_b32 v13, 2, v13")
    k.e(f"v_xor_b32 v10, v10, v13")
    k.e(f"v_lshl_add_u32 v15, v10, 4, v15")
    k.e(f"v_and_b32 v13, 1, v11")
    k.e(f"v_lshl_add_u32 v10, v13, 3, v15")
    k.e(f"v_and_b32 v13, 31, v14")
    k.e(f"v_lshlrev_b32 v12, 2, v12")
    k.e(f"v_sub_u32 v13, v13, v12")
    def set_qr(n):
        return [f"v_xor_b32 v15, {dt*64}, v10" + "\n" + f"v_add_u32 v{vQr[dt]}, {hex(CB[n])}, v15" for dt in range(4)]
    def wr(g, dt): return WR + (g % 3) * 16 + dt * 4
    def wreads(g):
        sp = g % 8
        its = []
        for dt in range(4):
            r = wr(g, dt)
            its.append(('lg', f"ds_read_b64_tr_b16 v[{r}:{r+1}], v{vQr[dt]} offset:{sp*4096}", ('w', g)))
            its.append(('lg', f"ds_read_b64_tr_b16 v[{r+2}:{r+3}], v{vQr[dt]} offset:{sp*4096+1024}", ('w', g)))
        return its
    stampt()
    k.wait_vm([('WQ', 0), ('xn', 0)]) if False else None
    k.e("s_waitcnt vmcnt(32)")
    k.e("s_barrier")
    k.items(set_qr(0))
    k.items(wreads(0)); k.items(wreads(1))
    stampt()
    for g in range(32):
        n, sp = g // 8, g % 8
        gaps = [[], [], [], []]
        pre = []
        if sp == 6 and n < 3:
            nn = n + 1
            pre.append(f"s_waitcnt vmcnt({ {1:20, 2:8, 3:0}[nn] })")
            pre.append("s_barrier")
            pre += set_qr(nn)
        pre.append(('wlg', ('w', g)))
        if g + 2 < 32:
            rd = wreads(g + 2)
            for j, it in enumerate(rd): gaps[j // 2].append(it)
        if sp == 6 and n == 1:
            dm = dma_wq(3)
            gaps[0] += dm[:6]; gaps[1].append(dm[6]); gaps[2].append(dm[7]); gaps[3].append(dm[8])
        k.items(pre)
        for dt in range(4):
            a = O + dt * 16
            c = "0" if g == 0 else f"v[{a}:{a+15}]"
            k.e(f"v_mfma_f32_32x32x16_bf16 v[{a}:{a+15}], v[{wr(g,dt)}:{wr(g,dt)+3}], v[{XN+4*g}:{XN+4*g+3}], {c}")
            k.items(gaps[dt])
        if sp == 6 and n == 2:
            k.e(f"s_cmp_eq_u32 s{sGrp}, 0")
            k.e("s_cbranch_scc1 L_k2_nov")
            k.e(f"s_mov_b32 s29, 0")
            sv = list(k.vm); its = []; dma_v(29, its); k.items(its); k.vm = sv
            k.label("L_k2_nov")
    stampt()
    c = (128 ** -0.5) * math.log2(math.e)
    import struct
    chex = hex(struct.unpack("<I", struct.pack("<f", c))[0])
    k.e(f"s_mov_b32 s{sT}, {chex}")
    k.e("s_nop 7"); k.e("s_nop 2")
    for r in range(64): k.e(f"v_mul_f32 v{O+r}, s{sT}, v{O+r}")
    for dt in range(4):
        for u in range(2):
            for j in range(4):
                k.e(f"v_cvt_pk_bf16_f32 v{Q+(2*dt+u)*4+j}, v{O+dt*16+8*u+2*j}, v{O+dt*16+8*u+2*j+1}")
    for r in range(64): k.e(f"v_mov_b32 v{O+r}, 0")
    k.e(f"v_mov_b32 v{vD}, v13")
    k.e(f"v_mov_b32 v{vl}, 0")
    k.e(f"v_mov_b32 v{vInf}, 0xff800000")
    k.e(f"s_mov_b32 s{sThr}, 0x47800000")
    k.e(f"s_mov_b32 s{sRem}, s{sQT}")
    for r in range(16):
        k.e(f"v_cmp_lt_i32 s[{sMask+2*r}:{sMask+2*r+1}], v{vD}, {8*(r//4)+r%4}")
    k.e("s_waitcnt vmcnt(8)")
    k.e("s_barrier")
    k.e(f"s_mov_b32 s{sTn}, 1")
    k.e(f"v_mov_b32 v{vKa}, v{vL16}")
    k.e(f"v_add_u32 v{vVa}, 65536, v{vL16}")
    k.e(f"s_cmp_eq_u32 s{sGrp}, 0")
    k.e("s_cbranch_scc1 L_k2_nol0")
    k.e(f"s_mov_b32 s29, 2"); its = []; dma_k(29, its); k.items(its)
    k.e(f"s_mov_b32 s29, 1"); its = []; dma_v(29, its); k.items(its)
    k.label("L_k2_nol0")
    def kread(sub, ds): return f"ds_read_b128 v[{FR+4*ds}:{FR+4*ds+3}], v{vKa} offset:{sub*8192+ds*1024}"
    def vread(sub, f): return f"ds_read_b128 v[{FR+4*f}:{FR+4*f+3}], v{vVa} offset:{sub*8192+f*1024}"
    def qk(p, n, first0=False):
        c = ("0" if first0 else f"v[{NEGM}:{NEGM+15}]") if n == 0 else f"v[{S[p]}:{S[p]+15}]"
        return f"v_mfma_f32_32x32x16_bf16 v[{S[p]}:{S[p]+15}], v[{FR+4*n}:{FR+4*n+3}], v[{Q+4*n}:{Q+4*n+3}], {c}"
    def pv(p, f):
        ks, dt = f // 4, f % 4
        a = O + 16 * dt
        return f"v_mfma_f32_32x32x16_bf16 v[{a}:{a+15}], v[{FR+4*f}:{FR+4*f+3}], v[{P[p]+4*ks}:{P[p]+4*ks+3}], v[{a}:{a+15}]"
    for ds in range(8): k.e(kread(0, ds))
    k.e("s_waitcnt lgkmcnt(4)")
    for n in range(8):
        if n == 4: k.e("s_waitcnt lgkmcnt(4)")
        k.e(qk(0, n, True))
        k.e(kread(1, n))
    def mask(p):
        return [f"v_cndmask_b32 v{S[p]+r}, v{S[p]+r}, v{vInf}, s[{sMask+2*r}:{sMask+2*r+1}]" for r in range(16)]
    k.e("s_nop 7"); k.e("s_nop 3")
    k.e(f"s_cmp_lg_u32 s{sRem}, 0")
    k.e("s_cbranch_scc1 L_k2_nomask0")
    k.items(mask(0))
    k.label("L_k2_nomask0")
    def rowmax(p, dst):
        its = [f"v_max3_f32 v{dst}, v{S[p]}, v{S[p]+1}, v{S[p]+2}"]
        for r in range(3, 15, 2): its.append(f"v_max3_f32 v{dst}, v{dst}, v{S[p]+r}, v{S[p]+r+1}")
        its.append(f"v_max_f32 v{dst}, v{dst}, v{S[p]+15}")
        its += [f"v_mov_b32 v{vT1}, v{dst}", "s_nop 1", f"v_permlane32_swap_b32 v{dst}, v{vT1}", "s_nop 1", f"v_max_f32 v{dst}, v{dst}, v{vT1}"]
        return its
    k.items(rowmax(0, vT0))
    for r in range(16): k.e(f"v_sub_f32 v{S[0]+r}, v{S[0]+r}, v{vT0}")
    for r in range(16): k.e(f"v_sub_f32 v{NEGM+r}, 0, v{vT0}")
    stampt()
    def sm_items(p):
        s = S[p]; la, lb = LA[p], LB[p]
        ex = lambda i: (8, f"v_exp_f32 v{E+i%8}, v{s+i}")
        def add(i):
            acc = la if i % 2 == 0 else lb
            if i < 2: return (4, f"v_mov_b32 v{acc}, v{E+i%8}")
            return (4, f"v_add_f32 v{acc}, v{acc}, v{E+i%8}")
        cv = lambda j: (4, f"v_cvt_pk_bf16_f32 v{P[p]+j}, v{E+(2*j)%8}, v{E+(2*j+1)%8}")
        return ex, add, cv
    def sm_gaps(p, ngaps=16):
        ex, add, cv = sm_items(p)
        g = [[] for _ in range(16)]
        egap = [0, 1, 2, 2, 3, 4, 5, 5, 6, 7, 8, 9, 10, 11, 12, 12]
        for i in range(16): g[egap[i]].append(ex(i)[1])
        la, lb = LA[p], LB[p]
        for i in range(2, 16):
            acc = la if i % 2 == 0 else lb
            if i < 4: t = f"v_add_f32 v{acc}, v{E+(i-2)%8}, v{E+i%8}"
            else: t = f"v_add_f32 v{acc}, v{acc}, v{E+i%8}"
            g[min(egap[i] + 1, 15) + (1 if i == 15 else 0)].append(t)
        for j in range(8):
            g[min(egap[2*j+1] + 1, 15)].append(cv(j)[1])
        g[14].append(f"v_add_f32 v{vLT}, v{la}, v{lb}")
        g[15].append(f"v_cmp_nge_f32 vcc, s{sThr}, v{vLT}")
        return g
    slow_sites = []
    def check(p, tag, qk_done=True):
        k.e(f"s_cbranch_vccnz L_slow_{tag}")
        k.label(f"L_back_{tag}")
        k.e(f"v_add_f32 v{vl}, v{vl}, v{vLT}")
        slow_sites.append((p, tag, qk_done))
    def barrier_part(loader):
        pre = []
        if loader: pre.append("s_waitcnt vmcnt(8)")
        pre.append("s_barrier")
        pre += [f"s_and_b32 s{sKs}, s{sTn}, 3", f"s_lshl_b32 s{sKs}, s{sKs}, 14",
                f"s_add_u32 s{sVs}, s{sTn}, 3", f"s_and_b32 s{sVs}, s{sVs}, 3", f"s_lshl_b32 s{sVs}, s{sVs}, 14", f"s_add_u32 s{sVs}, s{sVs}, 65536",
                f"v_add_u32 v{vKa}, s{sKs}, v{vL16}", f"v_add_u32 v{vVa}, s{sVs}, v{vL16}"]
        post = []
        if loader:
            post.append(f"s_add_u32 s29, s{sTn}, 2"); dma_k(29, post)
            post.append(f"s_add_u32 s29, s{sTn}, 1"); dma_v(29, post)
        post.append(f"s_add_u32 s{sTn}, s{sTn}, 1")
        return pre, post
    def spread(gaps, items, lo, hi):
        grps = []; j = 0
        while j < len(items):
            grp = []
            while j < len(items) and isinstance(items[j], str): grp.append(items[j]); j += 1
            if j < len(items): grp.append(items[j]); j += 1
            grps.append(grp)
        n = hi - lo
        for j, grp in enumerate(grps): gaps[lo + j * n // len(grps)] += grp
    def period(p, kind, loader, tag):
        g = sm_gaps(p)
        pn = 1 - p
        even = (p == 0)
        sub_v = 1 if even else 0
        sub_k = 0 if even else 1
        bpre, bpost = barrier_part(loader) if even else ([], [])
        late = [[] for _ in range(16)]
        if bpost: spread(late, bpost, 8, 16)
        for n in range(16):
            if n % 4 == 0 and not (kind == 'first' and n >= 8): k.e("s_waitcnt lgkmcnt(4)" if not (kind == 'first' and n == 4) else "s_waitcnt lgkmcnt(0)")
            if n == 8: k.items(bpre)
            if n < 8:
                k.e(qk(pn, n))
                if kind != 'first': k.e(vread(sub_v, n))
            else:
                if kind != 'first': k.e(pv(pn, n - 8))
                k.e(kread(sub_k, n - 8))
            k.items(g[n]); k.items(late[n])
        check(p, tag)
    def last(p, loader, tag):
        pn = 1 - p; even = (p == 0)
        sub_v = 1 if even else 0
        k.items(mask(p))
        g = sm_gaps(p)
        if even:
            k.e(f"s_cmp_eq_u32 s{sQT}, 0")
            k.e(f"s_cbranch_scc1 L_nopv_{tag}")
        for f in range(8): k.e(vread(sub_v, f))
        for f in range(8):
            if f % 4 == 0: k.e(f"s_waitcnt lgkmcnt({4 if f == 0 else 0})")
            k.e(pv(pn, f))
        if even: k.label(f"L_nopv_{tag}")
        for n in range(16): k.items(g[n])
        if even:
            bpre, bpost = barrier_part(loader)
            k.e("s_waitcnt lgkmcnt(0)")
            k.items(bpre); k.items(bpost)
        sub2 = 0 if even else 1
        for f in range(8): k.e(vread(sub2, f))
        check(p, tag, qk_done=False)
        for f in range(8):
            if f % 4 == 0: k.e(f"s_waitcnt lgkmcnt({4 if f == 0 else 0})")
            k.e(pv(p, f))
    def epilogue():
        k.e(f"v_mov_b32 v{vT1}, v{vl}")
        k.e("s_nop 1")
        k.e(f"v_permlane32_swap_b32 v{vl}, v{vT1}")
        k.e("s_nop 1")
        k.e(f"v_add_f32 v{vl}, v{vl}, v{vT1}")
        k.e(f"v_rcp_f32 v{vl}, v{vl}")
        k.e("s_nop 7"); k.e("s_nop 3")
        for dt in range(4):
            for r in range(16): k.e(f"v_mul_f32 v{O+16*dt+r}, v{O+16*dt+r}, v{vl}")
            for u in range(2):
                ds = 2 * dt + u
                pk = E + 4 * (ds % 4) if ds < 4 else S[0] + 4 * (ds % 4)
                for j in range(4): k.e(f"v_cvt_pk_bf16_f32 v{pk+j}, v{O+16*dt+8*u+2*j}, v{O+16*dt+8*u+2*j+1}")
                if ds == 4: k.e(f"s_add_u32 s{sCtx}, s{sCtx}, 4096")
                off = f" offset:{(ds%4)*1024}" if ds % 4 else ""
                k.e(f"buffer_store_dwordx4 v[{pk}:{pk+3}], v{vL16}, s[{sWS}:{sWS+3}], s{sCtx} offen{off} sc1")
    k.e(f"s_cmp_eq_u32 s{sGrp}, 0")
    k.e("s_cbranch_scc0 L_grp_short")
    for loader in (False, True):
        G = "S" if loader else "L"
        if loader: k.label("L_grp_short")
        k.e(f"s_cmp_eq_u32 s{sRem}, 0")
        k.e(f"s_cbranch_scc1 L_last0_{G}")
        period(0, 'first', loader, f"f{G}")
        k.e(".p2align 6") if False else None
        k.label(f"L_loop_{G}")
        k.e(f"s_sub_u32 s{sRem}, s{sRem}, 1")
        k.e(f"s_cmp_eq_u32 s{sRem}, 0")
        k.e(f"s_cbranch_scc1 L_last1_{G}")
        period(1, 'mid', loader, f"o{G}")
        k.e(f"s_sub_u32 s{sRem}, s{sRem}, 1")
        k.e(f"s_cmp_eq_u32 s{sRem}, 0")
        k.e(f"s_cbranch_scc1 L_last0_{G}")
        period(0, 'mid', loader, f"e{G}")
        k.e(f"s_branch L_loop_{G}")
        k.label(f"L_last1_{G}")
        last(1, loader, f"l1{G}")
        k.e(f"s_branch L_epi_{G}")
        k.label(f"L_last0_{G}")
        last(0, loader, f"l0{G}")
        k.label(f"L_epi_{G}")
        stampt() if not loader else None
        epilogue()
        if loader:
            k.label("L_ldr_loop")
            k.e(f"s_cmp_gt_u32 s{sTn}, s{sTt}")
            k.e("s_cbranch_scc1 L_ldr_done")
            k.e(f"s_cmp_ge_u32 s{sTn}, s{sTt}")
            k.e("s_cbranch_scc1 L_ldr_fin")
            k.e("s_waitcnt vmcnt(8)")
            k.e("s_barrier")
            its = [f"s_add_u32 s29, s{sTn}, 2"]; dma_k(29, its); its.append(f"s_add_u32 s29, s{sTn}, 1"); dma_v(29, its)
            k.items(its)
            k.e(f"s_add_u32 s{sTn}, s{sTn}, 1")
            k.e("s_branch L_ldr_loop")
            k.label("L_ldr_fin")
            k.e("s_waitcnt vmcnt(0)")
            k.e("s_barrier")
            k.label("L_ldr_done")
        k.e("s_branch L_k2_fin")
    for p, tag, qk_done in slow_sites:
        k.label(f"L_slow_{tag}")
        k.e("s_nop 15"); k.e("s_nop 3")
        k.items(rowmax(p, vT0))
        k.e(f"v_max_f32 v{vT0}, 0, v{vT0}")
        k.e(f"v_sub_f32 v{vT1}, 0, v{vT0}")
        k.e(f"v_exp_f32 v{vT1}, v{vT1}")
        for r in range(16): k.e(f"v_sub_f32 v{NEGM+r}, v{NEGM+r}, v{vT0}")
        for r in range(16): k.e(f"v_sub_f32 v{S[p]+r}, v{S[p]+r}, v{vT0}")
        if qk_done:
            for r in range(16): k.e(f"v_sub_f32 v{S[1-p]+r}, v{S[1-p]+r}, v{vT0}")
        for r in range(64): k.e(f"v_mul_f32 v{O+r}, v{O+r}, v{vT1}")
        k.e(f"v_mul_f32 v{vl}, v{vl}, v{vT1}")
        g = sm_gaps(p)
        for n in range(16):
            for it in g[n]:
                if not it.startswith("v_cmp"): k.e(it);
                if it.startswith("v_exp"): k.e("s_nop 0")
        k.e("s_nop 7")
        k.e(f"s_branch L_back_{tag}")
    k.label("L_k2_fin")
    if prof:
        k.e("s_waitcnt vmcnt(0)")
        k.e("s_memrealtime s[100:101]")
        k.e("s_waitcnt lgkmcnt(0)")
        prof_store(k, 1, sWS, sWv, 98, 100)
        if prof >= 2:
            stampt()
            prof_dump(k, 1, sWS, sWv, nst[0])
    k.label("L_k2_end")
    k.e("s_endpgm")
    errs = check_hazards(k.lines, "k2")
    return k, errs

if __name__ == "__main__":
    k, errs = gen_k2()
    print(len(k.lines), "lines;", len(errs), "hazards")
    for e in errs[:60]: print(e)
```

```python
from fw import *
from common import *
from k1 import prof_store, prof_dump
import os, struct
OPT = os.environ.get('K3OPT', '').split(',')

def f2h(x): return hex(struct.unpack("<I", struct.pack("<f", x))[0])

def skinny(kidx, name, mode, prof):
    k = K(name)
    L = name
    NS = 64 if mode == 'oproj' else 22
    D = 8
    vL16, vWa, vWb, vR0, vR1, vX = 1, 2, 3, 4, 5, 6
    ACC = 16
    BR = 80
    WF = 144
    RES = 160
    T = 168
    sWS, sW, sB, sRes, sOut = 4, 8, 12, 16, 20
    sWv, sNT, sMT, sT, sT2, sBo0, sBo1, sWo, sM0, sCnt = 24, 25, 26, 27, 28, 29, 30, 31, 32, 33
    nst = [0]
    def stampt():
        if prof >= 2:
            r = 66 + 2 * nst[0]; nst[0] += 1
            k.e(f"s_memtime s[{r}:{r+1}]"); k.e("s_waitcnt lgkmcnt(0)")
    k.e("s_cmp_ge_u32 s2, 256")
    k.e(f"s_cbranch_scc1 L_{L}_end")
    if prof: k.e("s_memrealtime s[98:99]")
    stampt()
    k.e(f"s_load_dwordx2 s[36:37], s[0:1], {ARG['wo'] if mode == 'oproj' else ARG['wd']}")
    k.e(f"s_load_dwordx2 s[38:39], s[0:1], {ARG['ws']}")
    k.e(f"s_load_dwordx2 s[40:41], s[0:1], {ARG['x'] if mode == 'oproj' else ARG['out']}")
    k.e("v_and_b32 v10, 63, v0")
    k.e("v_lshrrev_b32 v11, 6, v0")
    k.e(f"v_lshlrev_b32 v{vL16}, 4, v10")
    k.e(f"v_readfirstlane_b32 s{sWv}, v11")
    k.e(f"s_and_b32 s{sT}, s2, 7")
    k.e(f"s_lshr_b32 s{sT2}, s2, 3")
    k.e(f"s_and_b32 s{sNT}, s{sT2}, 7")
    k.e(f"s_lshr_b32 s{sT2}, s{sT2}, 3")
    k.e(f"s_lshl_b32 s{sMT}, s{sT}, 2")
    k.e(f"s_add_u32 s{sMT}, s{sMT}, s{sT2}")
    k.e("v_lshrrev_b32 v12, 3, v10")
    k.e("v_and_b32 v13, 7, v10")
    k.e("v_bfe_u32 v14, v10, 4, 1")
    k.e("v_lshlrev_b32 v14, 2, v14")
    k.e("v_xor_b32 v13, v13, v14")
    k.e("v_lshlrev_b32 v13, 4, v13")
    k.e(f"v_lshl_add_u32 v{vWa}, v12, 10, v13")
    k.e(f"v_add_u32 v{vWb}, {8192-1024}, v{vWa}")
    qstride = 262144 if mode == 'oproj' else 86 * 1024
    k.e(f"s_mul_i32 s{sBo0}, s{sMT}, {2*qstride}")
    k.e(f"s_mul_i32 s{sT}, s{sWv}, {NS*1024}")
    k.e(f"s_add_u32 s{sBo0}, s{sBo0}, s{sT}")
    k.e(f"s_add_u32 s{sBo1}, s{sBo0}, {qstride}")
    k.e(f"s_mul_i32 s{sWo}, s{sWv}, {NS*16384}")
    k.e(f"s_lshl_b32 s{sT}, s{sNT}, 7")
    k.e(f"s_add_u32 s{sWo}, s{sWo}, s{sT}")
    k.e(f"s_lshl_b32 s{sM0}, s{sWv}, 14")
    k.e("s_waitcnt lgkmcnt(0)")
    srd(k, sW, 36, 4096*512*2 if mode == 'oproj' else 1376*512*2)
    srd(k, sWS, 38, WS_SIZE)
    boff, bsize = (CTX_OFF, 64*262144) if mode == 'oproj' else (HP_OFF, 64*86*1024)
    k.e(f"s_add_u32 s{sB}, s38, {hex(boff)}")
    k.e(f"s_addc_u32 s{sB+1}, s39, 0")
    k.e(f"s_mov_b32 s{sB+2}, {hex(bsize)}")
    k.e(f"s_mov_b32 s{sB+3}, 0x00020000")
    srd(k, sRes, 40, 2048*512*2)
    def group(s, dyn):
        r = BR + (s % D) * 8
        its = [('vm', f"buffer_load_dwordx4 v[{r}:{r+3}], v{vL16}, s[{sB}:{sB+3}], s{sBo0} offen", ('g', s)),
               ('vm', f"buffer_load_dwordx4 v[{r+4}:{r+7}], v{vL16}, s[{sB}:{sB+3}], s{sBo1} offen", ('g', s)),
               f"s_add_u32 m0, s{sM0}, {(s%8)*2048}",
               f"s_add_u32 s{sBo0}, s{sBo0}, 1024",
               ('vm', f"buffer_load_dwordx4 v{vWa}, s[{sW}:{sW+3}], s{sWo} offen lds", ('g', s)),
               ('vm', f"buffer_load_dwordx4 v{vWb}, s[{sW}:{sW+3}], s{sWo} offen offset:1024 lds", ('g', s)),
               f"s_add_u32 s{sBo1}, s{sBo1}, 1024",
               f"s_add_u32 s{sWo}, s{sWo}, 16384"]
        return its
    for s in range(D): k.items(group(s, False))
    k.e(f"s_lshr_b32 s{sT}, s{sWv}, 1")
    k.e(f"s_and_b32 s{sT2}, s{sWv}, 1")
    k.e(f"s_lshl_b32 s34, s{sMT}, 1")
    k.e(f"s_add_u32 s34, s34, s{sT2}")
    k.e(f"s_lshl_b32 s35, s{sNT}, 1")
    k.e(f"s_add_u32 s35, s35, s{sT}")
    k.e("v_and_b32 v12, 31, v10")
    k.e("v_lshrrev_b32 v13, 5, v10")
    if mode == 'oproj':
        k.e("v_lshlrev_b32 v14, 10, v12")
        k.e(f"v_lshl_add_u32 v{vX}, v13, 3, v14")
        k.e(f"s_lshl_b32 s42, s34, 15")
        k.e(f"s_lshl_b32 s43, s35, 6")
        k.e(f"s_add_u32 s42, s42, s43")
        for g in range(4):
            k.vmem(f"buffer_load_dwordx2 v[{RES+2*g}:{RES+2*g+1}], v{vX}, s[{sRes}:{sRes+3}], s42 offen offset:{g*16}", 'res')
    else:
        k.e(f"s_lshl_b32 s42, s34, 5")
        k.e(f"s_lshl_b32 s43, s35, 1")
        k.e(f"s_add_u32 s42, s42, s43")
        k.e(f"s_lshl_b32 s42, s42, 10")
        k.e(f"s_add_u32 s42, s42, {hex(HF_OFF)}")
        for u in range(2):
            k.vmem(f"buffer_load_dwordx4 v[{RES+4*u}:{RES+4*u+3}], v{vL16}, s[{sWS}:{sWS+3}], s42 offen offset:{u*1024}", 'res')
        k.e("v_lshlrev_b32 v14, 10, v12")
        k.e(f"v_lshl_add_u32 v{vX}, v13, 4, v14")
    k.e("v_and_b32 v14, 15, v10")
    k.e("v_lshrrev_b32 v15, 2, v14")
    k.e("v_lshl_add_u32 v15, v13, 2, v15")
    k.e("v_lshlrev_b32 v15, 7, v15")
    k.e("v_bfe_u32 v8, v10, 4, 1")
    k.e("v_lshlrev_b32 v8, 1, v8")
    k.e("v_bfe_u32 v9, v14, 1, 1")
    k.e("v_add_u32 v8, v8, v9")
    k.e("v_lshrrev_b32 v9, 3, v14")
    k.e("v_lshlrev_b32 v9, 2, v9")
    k.e("v_xor_b32 v8, v8, v9")
    k.e("v_lshl_add_u32 v15, v8, 4, v15")
    k.e("v_and_b32 v9, 1, v14")
    k.e("v_lshl_add_u32 v15, v9, 3, v15")
    k.e(f"v_add_u32 v{vR0}, s{sM0}, v15")
    k.e(f"v_xor_b32 v{vR1}, 64, v{vR0}")
    def wf(s, mt): return WF + (s % 2) * 8 + mt * 4
    def wreads(s):
        its = []
        for mt in range(2):
            a = vR0 if mt == 0 else vR1
            r = wf(s, mt); o = (s % 8) * 2048
            its.append(('lg', f"ds_read_b64_tr_b16 v[{r}:{r+1}], v{a} offset:{o}", ('w', s)))
            its.append(('lg', f"ds_read_b64_tr_b16 v[{r+2}:{r+3}], v{a} offset:{o+1024}", ('w', s)))
        return its
    nres = 4 if mode == 'oproj' else 2
    stampt()
    def step(s, first, prefetch, vmn):
        if vmn is not None:
            k.e(f"s_waitcnt vmcnt({vmn})")
            k.items(wreads(s + 1))
            k.e("s_waitcnt lgkmcnt(4)")
        else:
            k.e("s_waitcnt lgkmcnt(0)")
        r = BR + (s % D) * 8
        pf = group(s + D, True) if prefetch else []
        n = 0
        for mt in range(2):
            for a in range(2):
                acc = ACC + (mt * 2 + a) * 16
                c = "0" if first else f"v[{acc}:{acc+15}]"
                k.e(f"v_mfma_f32_32x32x16_bf16 v[{acc}:{acc+15}], v[{wf(s,mt)}:{wf(s,mt)+3}], v[{r+4*a}:{r+4*a+3}], {c}")
                n += 1
                if n == 4: k.items(pf)
    k.e(f"s_waitcnt vmcnt({(D-1)*4 + nres})")
    k.items(wreads(0))
    nmain = NS - D
    VM = (D - 2) * 4
    if mode == 'oproj':
        for s in range(0, 8): step(s, s == 0, True, VM)
        k.e(f"s_mov_b32 s{sCnt}, {nmain // 8 - 1}")
        k.label(f"L_{L}_loop")
        for s in range(8, 16): step(s, False, True, VM)
        k.e(f"s_sub_u32 s{sCnt}, s{sCnt}, 1")
        k.e(f"s_cmp_lg_u32 s{sCnt}, 0")
        k.e(f"s_cbranch_scc1 L_{L}_loop")
    else:
        for s in range(0, nmain): step(s, s == 0, True, VM)
    for s in range(nmain, NS):
        rem = NS - 1 - (s + 1)
        step(s, False, False, rem * 4 if s + 1 < NS else None)
    stampt()
    k.e("s_nop 7"); k.e("s_nop 3")
    k.e(f"s_lshl_b32 s{sT}, s{sWv}, 14")
    k.e(f"s_add_u32 s{sT}, s{sT}, 65536")
    k.e(f"v_add_u32 v8, s{sT}, v{vL16}")
    for t in range(4):
        for g in range(4):
            k.e(f"ds_write_b128 v8, v[{ACC+16*t+4*g}:{ACC+16*t+4*g+3}] offset:{t*4096+g*1024}")
    k.e("s_waitcnt lgkmcnt(0)")
    k.e("s_barrier")
    k.e(f"s_lshl_b32 s{sT}, s{sWv}, 12")
    k.e(f"s_add_u32 s{sT}, s{sT}, 65536")
    k.e(f"v_add_u32 v8, s{sT}, v{vL16}")
    R = BR
    for w in range(4):
        for g in range(4):
            k.e(f"ds_read_b128 v[{R+16*w+4*g}:{R+16*w+4*g+3}], v8 offset:{w*16384+g*1024}")
    k.e("s_waitcnt lgkmcnt(8)")
    for r in range(16): k.e(f"v_add_f32 v{R+r}, v{R+r}, v{R+16+r}")
    k.e("s_waitcnt lgkmcnt(0)")
    for r in range(16): k.e(f"v_add_f32 v{R+32+r}, v{R+32+r}, v{R+48+r}")
    for r in range(16): k.e(f"v_add_f32 v{R+r}, v{R+r}, v{R+32+r}")
    k.e("s_waitcnt vmcnt(0)")
    PK = ACC
    for j in range(8): k.e(f"v_cvt_pk_bf16_f32 v{PK+j}, v{R+2*j}, v{R+2*j+1}")
    for j in range(8):
        k.e(f"v_lshlrev_b32 v{R+2*j}, 16, v{PK+j}")
        k.e(f"v_and_b32 v{R+2*j+1}, 0xffff0000, v{PK+j}")
        k.e(f"v_lshlrev_b32 v{R+16+2*j}, 16, v{RES+j}")
        k.e(f"v_and_b32 v{R+16+2*j+1}, 0xffff0000, v{RES+j}")
    for r in range(16): k.e(f"v_add_f32 v{R+r}, v{R+r}, v{R+16+r}")
    for j in range(8): k.e(f"v_cvt_pk_bf16_f32 v{PK+j}, v{R+2*j}, v{R+2*j+1}")
    if mode == 'oproj':
        k.e(f"s_lshl_b32 s42, s34, 5")
        k.e(f"s_lshl_b32 s43, s35, 1")
        k.e(f"s_add_u32 s42, s42, s43")
        k.e(f"s_lshl_b32 s42, s42, 10")
        k.e(f"s_add_u32 s42, s42, {hex(HF_OFF)}")
        for u in range(2):
            k.e(f"buffer_store_dwordx4 v[{PK+4*u}:{PK+4*u+3}], v{vL16}, s[{sWS}:{sWS+3}], s42 offen offset:{u*1024} sc1")
        for j in range(8):
            k.e(f"v_lshlrev_b32 v{R+2*j}, 16, v{PK+j}")
            k.e(f"v_and_b32 v{R+2*j+1}, 0xffff0000, v{PK+j}")
        k.e(f"v_add_f32 v{T}, v{R}, v{R+1}")
        k.e(f"v_mul_f32 v{T+1}, v{R}, v{R}")
        k.e(f"v_fmac_f32 v{T+1}, v{R+1}, v{R+1}")
        for r in range(2, 16):
            k.e(f"v_add_f32 v{T}, v{T}, v{R+r}")
            k.e(f"v_fmac_f32 v{T+1}, v{R+r}, v{R+r}")
        k.e(f"v_mov_b32 v{T+2}, v{T}")
        k.e(f"v_mov_b32 v{T+3}, v{T+1}")
        k.e("s_nop 1")
        k.e(f"v_permlane32_swap_b32 v{T}, v{T+2}")
        k.e(f"v_permlane32_swap_b32 v{T+1}, v{T+3}")
        k.e("s_nop 1")
        k.e(f"v_add_f32 v{T}, v{T}, v{T+2}")
        k.e(f"v_add_f32 v{T+1}, v{T+1}, v{T+3}")
        k.e(f"v_lshlrev_b32 v8, 7, v12")
        k.e(f"s_lshl_b32 s42, s34, 12")
        k.e(f"s_lshl_b32 s43, s35, 3")
        k.e(f"s_add_u32 s42, s42, s43")
        k.e(f"s_add_u32 s42, s42, {hex(ST_OFF)}")
        k.e(f"buffer_store_dwordx2 v[{T}:{T+1}], v8, s[{sWS}:{sWS+3}], s42 offen sc1")
    else:
        k.e("s_nop 1")
        for u in range(2):
            k.e(f"v_permlane32_swap_b32 v{PK+4*u}, v{PK+4*u+2}")
            k.e(f"v_permlane32_swap_b32 v{PK+4*u+1}, v{PK+4*u+3}")
        k.e(f"s_lshl_b32 s42, s34, 15")
        k.e(f"s_lshl_b32 s43, s35, 6")
        k.e(f"s_add_u32 s42, s42, s43")
        for u in range(2):
            k.e(f"buffer_store_dwordx4 v[{PK+4*u}:{PK+4*u+3}], v{vX}, s[{sRes}:{sRes+3}], s42 offen offset:{u*32}")
    if prof:
        k.e("s_waitcnt vmcnt(0)")
        k.e("s_memrealtime s[100:101]")
        k.e("s_waitcnt lgkmcnt(0)")
        prof_store(k, kidx, sWS, sWv, 98, 100)
        if prof >= 2:
            stampt(); prof_dump(k, kidx, sWS, sWv, nst[0])
    k.label(f"L_{L}_end")
    k.e("s_endpgm")
    return k

def ffn1(kidx, prof):
    k = K("ffn1"); L = "ffn1"
    vL16, vA64g, vA, vB = 1, 2, 3, 4
    vD64 = [2, 3]
    HB = 128
    G = 16; U = 64
    WF = 112
    sWS, sWG, sWU = 4, 8, 12
    sWv, sRB, sCB, sT, sT2, sQT = 24, 25, 26, 27, 28, 29
    nst = [0]
    def stampt():
        if prof >= 2:
            r = 66 + 2 * nst[0]; nst[0] += 1
            k.e(f"s_memtime s[{r}:{r+1}]"); k.e("s_waitcnt lgkmcnt(0)")
    k.e("s_lshr_b32 s28, s2, 3")
    k.e("s_cmp_ge_u32 s28, 30")
    k.e(f"s_cbranch_scc1 L_{L}_end")
    if prof: k.e("s_memrealtime s[98:99]")
    stampt()
    k.e(f"s_load_dwordx4 s[36:39], s[0:1], {ARG['wg']}")
    k.e(f"s_load_dwordx2 s[40:41], s[0:1], {ARG['ws']}")
    k.e("v_and_b32 v10, 63, v0")
    k.e("v_lshrrev_b32 v11, 6, v0")
    k.e(f"v_lshlrev_b32 v{vL16}, 4, v10")
    k.e(f"v_readfirstlane_b32 s{sWv}, v11")
    k.e(f"s_and_b32 s{sT}, s2, 7")
    k.e(f"s_lshl_b32 s{sRB}, s{sT}, 1")
    k.e(f"s_and_b32 s{sT}, s28, 1")
    k.e(f"s_add_u32 s{sRB}, s{sRB}, s{sT}")
    k.e(f"s_lshr_b32 s{sCB}, s28, 1")
    k.e(f"s_lshl_b32 s{sQT}, s{sRB}, 2")
    k.e(f"s_add_u32 s{sQT}, s{sQT}, s{sWv}")
    v64, v32 = 5, 6
    k.e("v_lshrrev_b32 v12, 3, v10")
    k.e("v_and_b32 v13, 7, v10")
    k.e("v_bfe_u32 v14, v10, 4, 1")
    k.e("v_lshlrev_b32 v14, 2, v14")
    k.e("v_xor_b32 v13, v13, v14")
    k.e("v_lshlrev_b32 v13, 4, v13")
    k.e("v_mul_u32_u24 v12, 2752, v12")
    k.e(f"v_add_u32 v{v64}, v12, v13")
    k.e("v_lshrrev_b32 v12, 2, v10")
    k.e("v_and_b32 v13, 3, v10")
    k.e("v_lshlrev_b32 v13, 4, v13")
    k.e("v_mul_u32_u24 v12, 2752, v12")
    k.e(f"v_add_u32 v{v32}, v12, v13")
    k.e(f"v_add_u32 v{v32}, 128, v{v32}")
    k.e("s_waitcnt lgkmcnt(0)")
    srd(k, sWG, 36, 512*1376*2)
    srd(k, sWU, 38, 512*1376*2)
    srd(k, sWS, 40, WS_SIZE)
    SLOT = [0, 49152, 98304, 0]
    k.e(f"s_mul_i32 s30, s{sCB}, 192")
    k.e(f"s_mul_i32 s31, s{sWv}, {32*2752}")
    k.e(f"s_add_u32 s30, s30, s31")
    k.e(f"s_lshl_b32 s31, s{sWv}, 12")
    k.e(f"s_lshl_b32 s32, s{sWv}, 11")
    def dma_chunk(c):
        its = []
        for mi, srdw in enumerate((sWG, sWU)):
            base = SLOT[c] + mi * 24576
            for j in range(4):
                its += [f"s_add_u32 s{sT}, s30, {c*128*2752 + j*8*2752}", f"s_add_u32 m0, s31, {base + j*1024}", "s_nop 0",
                        ('vm', f"buffer_load_dwordx4 v{v64}, s[{srdw}:{srdw+3}], s{sT} offen lds", ('W', c))]
            for j in range(2):
                its += [f"s_add_u32 s{sT}, s30, {c*128*2752 + j*16*2752}", f"s_add_u32 m0, s32, {base + 16384 + j*1024}", "s_nop 0",
                        ('vm', f"buffer_load_dwordx4 v{v32}, s[{srdw}:{srdw+3}], s{sT} offen lds", ('W', c))]
        return its
    k.e("v_and_b32 v12, 31, v10")
    k.e("v_lshrrev_b32 v13, 5, v10")
    k.e("v_lshlrev_b32 v14, 7, v12")
    k.e("v_lshl_add_u32 v14, v13, 6, v14")
    k.e(f"s_lshl_b32 s{sT2}, s{sQT}, 12")
    k.e(f"s_add_u32 s{sT2}, s{sT2}, {hex(ST_OFF)}")
    for j in range(4):
        k.vmem(f"buffer_load_dwordx4 v[{G+4*j}:{G+4*j+3}], v14, s[{sWS}:{sWS+3}], s{sT2} offen offset:{16*j}", 'st')
    k.items(dma_chunk(0))
    k.e(f"s_lshl_b32 s33, s{sQT}, 15")
    k.e(f"s_add_u32 s33, s33, {hex(HF_OFF)}")
    def hloads(lo, hi):
        for s in range(lo, hi):
            if s % 4 == 0 and s: k.e(f"s_add_u32 s33, s33, 4096")
            off = f" offset:{(s%4)*1024}" if s % 4 else ""
            k.vmem(f"buffer_load_dwordx4 v[{HB+4*s}:{HB+4*s+3}], v{vL16}, s[{sWS}:{sWS+3}], s33 offen{off}", ('h', s // 8))
    hloads(0, 8)
    k.items(dma_chunk(1)); hloads(8, 16)
    vR0, vR1, vR2 = 7, 8, 9
    k.e("v_and_b32 v14, 15, v10")
    k.e("v_lshrrev_b32 v15, 2, v14")
    k.e("v_lshl_add_u32 v15, v13, 2, v15")
    k.e("v_bfe_u32 v2, v10, 4, 1")
    k.e("v_lshlrev_b32 v3, 1, v2")
    k.e("v_bfe_u32 v4, v14, 1, 1")
    k.e("v_add_u32 v3, v3, v4")
    k.e("v_lshrrev_b32 v4, 3, v14")
    k.e("v_lshlrev_b32 v4, 2, v4")
    k.e("v_xor_b32 v3, v3, v4")
    k.e("v_lshlrev_b32 v3, 4, v3")
    k.e("v_and_b32 v4, 1, v14")
    k.e("v_lshl_add_u32 v3, v4, 3, v3")
    k.e(f"v_lshl_add_u32 v{vR0}, v15, 7, v3")
    k.e(f"v_xor_b32 v{vR1}, 64, v{vR0}")
    k.e("v_and_b32 v4, 3, v14")
    k.e("v_lshlrev_b32 v4, 3, v4")
    k.e("v_lshl_add_u32 v4, v2, 5, v4")
    k.e(f"v_lshl_add_u32 v{vR2}, v15, 6, v4")
    k.wait_vm('st')
    k.e(f"v_add_f32 v2, v{G}, v{G+2}")
    k.e(f"v_add_f32 v3, v{G+1}, v{G+3}")
    for j in range(2, 8):
        k.e(f"v_add_f32 v2, v2, v{G+2*j}")
        k.e(f"v_add_f32 v3, v3, v{G+2*j+1}")
    k.e("v_mov_b32 v4, v2"); k.e("v_mov_b32 v11, v3"); k.e("s_nop 1")
    k.e("v_permlane32_swap_b32 v2, v4"); k.e("v_permlane32_swap_b32 v3, v11"); k.e("s_nop 1")
    k.e("v_add_f32 v2, v2, v4"); k.e("v_add_f32 v3, v3, v11")
    k.e("v_mul_f32 v2, 0x3b000000, v2")
    k.e("v_mul_f32 v3, 0x3b000000, v3")
    k.e("v_fma_f32 v3, -v2, v2, v3")
    k.e("v_max_f32 v3, 0, v3")
    k.e("v_cvt_pk_bf16_f32 v2, v2, v2"); k.e("v_cvt_pk_bf16_f32 v3, v3, v3")
    k.e("v_lshlrev_b32 v2, 16, v2"); k.e("v_lshlrev_b32 v3, 16, v3")
    k.e("v_add_f32 v3, 0x3727c5ac, v3")
    k.e("v_cvt_pk_bf16_f32 v3, v3, v3"); k.e("v_lshlrev_b32 v3, 16, v3")
    k.e("v_sqrt_f32 v3, v3"); k.e("s_nop 0")
    k.e("v_cvt_pk_bf16_f32 v3, v3, v3"); k.e("v_lshlrev_b32 v3, 16, v3")
    k.e("v_rcp_f32 v3, v3"); k.e("s_nop 0")
    k.e("v_mul_f32 v4, v2, v3")
    k.e("v_sub_f32 v4, 0, v4")
    vAa, vBb = 3, 4
    def norm(s):
        its = []
        for j in range(4):
            r = HB + 4 * s + j
            its += [f"v_lshlrev_b32 v12, 16, v{r}", f"v_and_b32 v13, 0xffff0000, v{r}",
                    f"v_fma_f32 v12, v12, v{vAa}, v{vBb}", f"v_fma_f32 v13, v13, v{vAa}, v{vBb}",
                    f"v_cvt_pk_bf16_f32 v{r}, v12, v13"]
        return its
    def fr(gidx): return WF + (gidx % 4) * 4
    def fread(gidx):
        s, f = gidx // 6, gidx % 6
        c, sp = s // 8, s % 8
        mi, ft = f % 2, f // 2
        base = mi * 24576
        if ft < 2: a, o, second = (vR0 if ft == 0 else vR1), base + sp * 2048, 1024
        else: a, o, second = vR2, base + 16384 + sp * 1024, 512
        r = fr(gidx)
        return [('lg', f"ds_read_b64_tr_b16 v[{r}:{r+1}], v{a} offset:{o}", ('f', gidx)),
                ('lg', f"ds_read_b64_tr_b16 v[{r+2}:{r+3}], v{a} offset:{o+second}", ('f', gidx))]
    def setbase(c):
        d = SLOT[c] - (SLOT[c-1] if c else 0)
        if d == 0: return []
        return [f"v_add_u32 v{r}, {hex(d & 0xffffffff)}, v{r}" for r in (vR0, vR1, vR2)]
    stampt()
    k.wait_vm([('W', 0), ('h', 0)])
    k.e("s_barrier")
    k.items(norm(0))
    PF = 3
    for g in range(PF): k.items(fread(g))
    NG = 32 * 6
    extra = {}
    def add(g, its): extra.setdefault(g, []).extend(its)
    ch2 = dma_chunk(2)
    grp = []; cur = []
    for it in ch2:
        cur.append(it)
        if not isinstance(it, str): grp.append(cur); cur = []
    for j, gg in enumerate(grp): add(j, gg)
    for s in range(16, 32):
        its = []
        if s % 4 == 0: its.append("s_add_u32 s33, s33, 4096")
        off = f" offset:{(s%4)*1024}" if s % 4 else ""
        its.append(('vm', f"buffer_load_dwordx4 v[{HB+4*s}:{HB+4*s+3}], v{vL16}, s[{sWS}:{sWS+3}], s33 offen{off}", ('h', s // 8)))
        add(12 + (s - 16), its)
    for gidx in range(NG):
        s, f = gidx // 6, gidx % 6
        c, sp = s // 8, s % 8
        mi, ft = f % 2, f // 2
        pre = []; post = []
        nxt = gidx + PF
        if nxt < NG and nxt % 48 == 0:
            cn = nxt // 48
            pre.append(('wvm', [('W', cn)]))
            pre.append("s_barrier")
            pre += setbase(cn)
            if cn == 2:
                ch3 = dma_chunk(3); grp = []; cur = []
                for it in ch3:
                    cur.append(it)
                    if not isinstance(it, str): grp.append(cur); cur = []
                for j, gg in enumerate(grp): add(gidx + 1 + j, gg)
        if f == 0 and (s + 1) % 8 == 0 and s + 1 < 32: pre.append(('wvm', [('h', (s + 1) // 8)]))
        pre.append(('wlg', ('f', gidx)))
        if nxt < NG: post += fread(nxt)
        if s + 1 < 32:
            nm = norm(s + 1)
            if f < 5: post += nm[4*f:4*f+4]
        post += extra.get(gidx, [])
        k.items(pre)
        acc = (G if mi == 0 else U) + 16 * ft
        cc = "0" if s == 0 else f"v[{acc}:{acc+15}]"
        k.e(f"v_mfma_f32_32x32x16_bf16 v[{acc}:{acc+15}], v[{fr(gidx)}:{fr(gidx)+3}], v[{HB+4*s}:{HB+4*s+3}], {cc}")
        k.items(post)
    stampt()
    k.e("s_nop 7"); k.e("s_nop 3")
    k.e(f"s_mul_i32 s{sT}, s{sQT}, 86")
    k.e(f"s_mul_i32 s{sT2}, s{sCB}, 6")
    k.e(f"s_add_u32 s{sT}, s{sT}, s{sT2}")
    k.e(f"s_lshl_b32 s{sT}, s{sT}, 10")
    k.e(f"s_add_u32 s{sT}, s{sT}, {hex(HP_OFF)}")
    for ft in range(3):
        if ft == 1:
            k.e(f"s_cmp_eq_u32 s{sCB}, 14")
            k.e(f"s_cbranch_scc1 L_{L}_fin")
        for r in range(16):
            k.e(f"v_max_f32 v{G+16*ft+r}, 0, v{G+16*ft+r}")
            k.e(f"v_mul_f32 v{G+16*ft+r}, v{G+16*ft+r}, v{U+16*ft+r}")
        for u in range(2):
            pk = HB + 8 * ft + 4 * u
            for j in range(4): k.e(f"v_cvt_pk_bf16_f32 v{pk+j}, v{G+16*ft+8*u+2*j}, v{G+16*ft+8*u+2*j+1}")
            fs = 2 * ft + u
            if fs == 4: k.e(f"s_add_u32 s{sT}, s{sT}, 4096")
            off = f" offset:{(fs%4)*1024}" if fs % 4 else ""
            k.e(f"buffer_store_dwordx4 v[{pk}:{pk+3}], v{vL16}, s[{sWS}:{sWS+3}], s{sT} offen{off} sc1")
    k.label(f"L_{L}_fin")
    if prof:
        k.e("s_waitcnt vmcnt(0)")
        k.e("s_memrealtime s[100:101]")
        k.e("s_waitcnt lgkmcnt(0)")
        prof_store(k, kidx, sWS, sWv, 98, 100)
        if prof >= 2:
            stampt(); prof_dump(k, kidx, sWS, sWv, nst[0])
    k.label(f"L_{L}_end")
    k.e("s_endpgm")
    return k

def kernels(prof):
    out = []
    for nm, kk, nv, thr, lds in (("oproj_kernel", skinny(2, "oproj", 'oproj', prof), 176, 256, 131072),
                                 ("ffn1_kernel", ffn1(3, prof), 256, 256, 147456),
                                 ("ffn2_kernel", skinny(4, "ffn2", 'down', prof), 176, 256, 131072)):
        errs = check_hazards(kk.lines, nm)
        assert not errs, errs[:8]
        out.append((nm, kk, nv, nv, thr, lds))
    return out
```

```python
import sys
from fw import *
from common import *
import k1
NAME = "sequential_preLN__compressed_kv_cla__glu_gated_reglu__prompt"
HEADER = open("cdna_kernels/%s.s.ref" % NAME).read().split("; Override launch")[0]
def build(prof=False, only=None):
    kernels = []
    k, errs = k1.gen_k1(prof); assert not errs, errs[:5]
    kernels.append(("kv_kernel", kernel_text(k, "kv_kernel", 512, 256), 256, 256, 163840))
    try:
        import k2
        k, errs = k2.gen_k2(prof); assert not errs, errs[:5]
        kernels.append(("attn_kernel", kernel_text(k, "attn_kernel", 256, 256), 256, 512, k2.LDS))
    except ImportError: pass
    try:
        import k3
        for nm, fn, nv, acc, thr, lds in k3.kernels(prof):
            kernels.append((nm, kernel_text(fn, nm, nv, acc), 256, thr, lds))
    except ImportError: pass
    if only: kernels = [x for x in kernels if x[0] in only]
    s = HEADER
    for nm, txt, g, b, lds in kernels:
        s += f"; @launch kernel={nm} grid=({g},1,1) block=({b},1,1) lds={lds}\n"
    s += '.amdgcn_target "amdgcn-amd-amdhsa--gfx950"\n'
    for nm, txt, g, b, lds in kernels: s += txt
    s += '.text\nL_text_end:\ns_endpgm\n'
    return s, kernels
if __name__ == "__main__":
    prof = 2 if "prof2" in sys.argv else (1 if "prof" in sys.argv else 0)
    out = [a for a in sys.argv[1:] if a.endswith(".s")]
    s, ks = build(prof)
    path = out[0] if out else "cdna_kernels/%s.s" % NAME
    open(path, "w").write(s)
    print("wrote", path, len(s), "bytes;", [(x[0]) for x in ks])
```

```python
XN_OFF   = 0x0000000
KV_OFF   = 0x0200000
CTX_OFF  = 0x2200000
HF_OFF   = 0x3200000
ST_OFF   = 0x3400000
HP_OFF   = 0x3500000
WS_SIZE  = 0x10000000
ARG = dict(x=0, ckv=8, wq=16, wuk=24, wuv=32, wo=40, bx=48, wg=56, wu=64, wd=72, out=80, dbg=88, ws=96)

def srd(k, dst, ptr_lo, nbytes):
    k.e(f"s_mov_b32 s{dst}, s{ptr_lo}")
    k.e(f"s_mov_b32 s{dst+1}, s{ptr_lo+1}")
    k.e(f"s_mov_b32 s{dst+2}, {hex(nbytes)}")
    k.e(f"s_mov_b32 s{dst+3}, 0x00020000")

def kernel_text(k, name, nvgpr, accum, nsgpr=102):
    s = f""".text
.globl {name}
.p2align 8
.type {name},@function
{name}:
""" + k.text() + f""".section .rodata,"a"
.p2align 6
.amdhsa_kernel {name}
  .amdhsa_next_free_vgpr {nvgpr}
  .amdhsa_next_free_sgpr {nsgpr}
  .amdhsa_accum_offset {accum}
  .amdhsa_group_segment_fixed_size 0
  .amdhsa_kernarg_size 104
  .amdhsa_user_sgpr_count 2
  .amdhsa_user_sgpr_kernarg_segment_ptr 1
  .amdhsa_system_sgpr_workgroup_id_x 1
  .amdhsa_float_denorm_mode_32 3
.end_amdhsa_kernel
"""
    return s

def stamp(k, slot, prof, stmp=90):
    pass

import struct as _st, math as _m
QSCALE = (128 ** -0.5) * _m.log2(_m.e)
QSCALE_HEX = hex(_st.unpack("<I", _st.pack("<f", QSCALE))[0])
```

```python
from fw import *
from common import *
import os
OPT = os.environ.get('K1OPT', '').split(',')
PS0 = int(os.environ.get('PS0', '1'))

def groups(items):
    grps = []; j = 0
    while j < len(items):
        grp = []
        while j < len(items) and isinstance(items[j], str): grp.append(items[j]); j += 1
        if j < len(items): grp.append(items[j]); j += 1
        grps.append(grp)
    return grps

def gen_k1(prof=False):
    STF = '' if 'plainst' in OPT else ' sc1'
    WNT = '' if 'nownt' in OPT else ' nt'
    CNT = ' nt' if 'cnt' in OPT else ''
    k = K("k1")
    vL, vL16, vWr0, vWr1 = 1, 2, 3, 4
    vW = [5, 6, 7, 8]; vC = [9, 10, 11, 12]; vCr = list(range(13, 21))
    ACC = [64, 128]; WF = 192; PK = 224
    XR = 40; X = 48
    vDum = 39
    sCKV, sWUK, sWUV, sWS, sX = 4, 8, 12, 16, 20
    sW_, sH, sKB, sT, sH256, sW4096, sKV0, sKV1, sCoff, sStage, sT2, sTT = 24, 25, 26, 27, 28, 29, 30, 31, 32, 33, 34, 35
    sWQ = 48; sTch = 52
    nst = [0]
    def stampt():
        if prof >= 2:
            r = 66 + 2 * nst[0]; nst[0] += 1
            k.e(f"s_memtime s[{r}:{r+1}]"); k.e("s_waitcnt lgkmcnt(0)")
    k.e(f"s_cmp_ge_u32 s2, 256")
    k.e(f"s_cbranch_scc1 L_k1_end")
    if prof: k.e("s_memrealtime s[60:61]")
    stampt()
    k.e(f"s_load_dwordx4 s[36:39], s[0:1], 0")
    k.e(f"s_load_dwordx4 s[40:43], s[0:1], 24")
    k.e(f"s_load_dwordx2 s[44:45], s[0:1], 96")
    k.e(f"s_load_dwordx2 s[46:47], s[0:1], 16")
    k.e(f"v_and_b32 v{vL}, 63, v0")
    k.e(f"v_lshrrev_b32 v21, 6, v0")
    k.e(f"v_lshlrev_b32 v{vL16}, 4, v{vL}")
    k.e(f"v_readfirstlane_b32 s{sW_}, v21")
    k.e(f"s_and_b32 s{sT}, s2, 3")
    k.e(f"s_lshr_b32 s{sTT}, s2, 3")
    k.e(f"s_lshl_b32 s{sH}, s{sT}, 3")
    k.e(f"s_and_b32 s{sT}, s{sTT}, 7")
    k.e(f"s_add_u32 s{sH}, s{sH}, s{sT}")
    k.e(f"s_and_b32 s{sKB}, s2, 4")
    k.e(f"s_lshr_b32 s{sT}, s{sTT}, 3")
    k.e(f"s_add_u32 s{sKB}, s{sKB}, s{sT}")
    if 'map8' not in OPT:
        k.e(f"s_and_b32 s{sT}, s2, 7"); k.e(f"s_lshl_b32 s{sH}, s{sT}, 2"); k.e(f"s_and_b32 s{sT}, s{sTT}, 3"); k.e(f"s_add_u32 s{sH}, s{sH}, s{sT}")
        k.e(f"s_lshr_b32 s{sKB}, s{sTT}, 2")
    k.e(f"s_lshl_b32 s{sH256}, s{sH}, 8")
    k.e(f"s_lshl_b32 s{sW4096}, s{sW_}, 12")
    k.e(f"s_lshl_b32 s{sT}, s{sKB}, 3")
    k.e(f"s_lshl_b32 s{sT2}, s{sW_}, 1")
    k.e(f"s_add_u32 s{sT}, s{sT}, s{sT2}")
    k.e(f"s_lshl_b32 s{sCoff}, s{sT}, 15")
    k.e(f"s_lshl_b32 s{sKV0}, s{sT}, 14")
    k.e(f"s_mul_i32 s{sStage}, s{sW_}, 24576")
    k.e(f"s_add_u32 s{sStage}, s{sStage}, 65536")
    k.e(f"v_lshrrev_b32 v26, 3, v{vL}")
    k.e(f"v_and_b32 v27, 7, v{vL}")
    k.e(f"v_lshrrev_b32 v28, 4, v{vL}")
    k.e(f"v_and_b32 v29, 1, v28")
    k.e(f"v_lshlrev_b32 v29, 2, v29")
    k.e(f"v_xor_b32 v27, v27, v29")
    k.e(f"v_lshlrev_b32 v27, 4, v27")
    k.e(f"v_lshl_add_u32 v27, v26, 13, v27")
    k.e(f"s_lshl_b32 s{sT}, s{sW_}, 18")
    k.e(f"v_add_u32 v{vW[0]}, s{sT}, v27")
    for j in range(1, 4):
        k.e(f"v_add_u32 v{vW[j]}, {hex(j*(65536-1024))}, v{vW[0]}")
    k.e(f"v_and_b32 v29, 15, v{vL}")
    for j in range(4):
        k.e(f"v_add_u32 v30, {4*j}, v28")
        k.e(f"v_xor_b32 v30, v30, v29")
        k.e(f"v_lshlrev_b32 v30, 4, v30")
        k.e(f"v_lshl_add_u32 v30, v28, 10, v30")
        k.e(f"v_add_u32 v{vC[j]}, {j*3072}, v30")
    k.e("s_waitcnt lgkmcnt(0)")
    srd(k, sCKV, 38, 2048*512*2)
    srd(k, sWUK, 40, 512*4096*2)
    CH = [(0,0),(1,0),(0,1),(1,1),(0,2),(1,2),(0,3),(1,3)] + [(2,q) for q in range(4)] + [(3,q) for q in range(4)]
    SLOT = [0, 1, 2, 3, 0, 1, 2, 3, 0, 1, 4, 5, 6, 7, 8, 9]
    ISSUE = {1: [3], 2: [4], 3: [5], 4: [6], 5: [7], 6: [8], 7: [9, 10], 8: [11, 12], 9: [13], 10: [14], 11: [15]}
    def dma_w(m):
        p, q = CH[m]
        srdw = sWUK if p < 2 else sWUV
        its = [f"s_add_u32 s{sT}, s{sH256}, {hex(q*128*8192 + (p%2)*128)}",
               f"s_add_u32 m0, s{sW4096}, {hex(SLOT[m]*16384)}"]
        its.append("s_nop 0")
        for j in range(4):
            off = f" offset:{j*1024}" if j else ""
            its.append(('vm', f"buffer_load_dwordx4 v{vW[j]}, s[{srdw}:{srdw+3}], s{sT} offen{off}{WNT} lds", ('W', m)))
        return its
    def dma_c(n):
        i, q, slot = n % 2, n // 2, n % 3
        its = []
        for hi in range(2):
            its.append(f"s_add_u32 s{sT2}, s{sCoff}, {hex(i*32768 + q*256 + hi*16384)}")
            its.append(f"s_add_u32 m0, s{sStage}, {hex(slot*8192 + hi*4096)}")
            its.append("s_nop 0")
            for j in range(4):
                off = f" offset:{j*1024}" if j else ""
                its.append(('vm', f"buffer_load_dwordx4 v{vC[j]}, s[{sCKV}:{sCKV+3}], s{sT2} offen{off}{CNT} lds", ('C', n)))
        return its
    k.items(dma_w(0)); k.items(dma_c(0)); k.items(dma_c(1))
    srd(k, sWUV, 42, 512*4096*2)
    srd(k, sWS, 44, WS_SIZE)
    srd(k, sX, 36, 2048*512*2)
    srd(k, sWQ, 46, 512*4096*2)
    k.e(f"s_lshl_b32 s{sT2}, s{sH}, 20")
    k.e(f"s_add_u32 s{sKV0}, s{sKV0}, s{sT2}")
    k.e(f"s_add_u32 s{sKV0}, s{sKV0}, {hex(KV_OFF)}")
    k.e(f"s_add_u32 s{sKV1}, s{sKV0}, 16384")
    k.e(f"v_lshrrev_b32 v23, 5, v{vL}")
    k.e(f"v_and_b32 v24, 31, v{vL}")
    k.e(f"v_lshrrev_b32 v30, 2, v29")
    k.e(f"v_lshl_add_u32 v30, v23, 3, v30")
    k.e(f"v_lshlrev_b32 v30, 7, v30")
    k.e(f"v_and_b32 v31, 1, v28")
    k.e(f"v_lshlrev_b32 v31, 1, v31")
    k.e(f"v_bfe_u32 v32, v29, 1, 1")
    k.e(f"v_add_u32 v31, v31, v32")
    k.e(f"v_lshrrev_b32 v32, 3, v29")
    k.e(f"v_lshlrev_b32 v32, 2, v32")
    k.e(f"v_xor_b32 v31, v31, v32")
    k.e(f"v_lshl_add_u32 v30, v31, 4, v30")
    k.e(f"v_and_b32 v32, 1, v29")
    k.e(f"v_lshl_add_u32 v{vWr0}, v32, 3, v30")
    k.e(f"v_xor_b32 v{vWr1}, 64, v{vWr0}")
    k.e(f"v_and_b32 v30, 15, v24")
    k.e(f"v_xor_b32 v30, v30, v23")
    k.e(f"v_lshlrev_b32 v30, 4, v30")
    k.e(f"v_lshl_add_u32 v30, v24, 8, v30")
    for j in range(8):
        k.e(f"v_xor_b32 v31, {j*32}, v30")
        k.e(f"v_add_u32 v{vCr[j]}, s{sStage}, v31")
    k.items(dma_w(1)); k.items(dma_c(2))
    k.e(f"s_lshl_b32 s{sT}, s2, 3")
    k.e(f"s_lshl_b32 s{sT2}, s{sW_}, 1")
    k.e(f"s_add_u32 s{sT}, s{sT}, s{sT2}")
    k.e(f"v_add_u32 v25, s{sT}, v23")
    k.e(f"v_lshlrev_b32 v22, 10, v25")
    k.e(f"v_lshl_add_u32 v22, v24, 4, v22")
    xl = [('vm', f"buffer_load_dwordx4 v[{XR}:{XR+3}], v22, s[{sX}:{sX+3}], 0 offen", 'x'),
          ('vm', f"buffer_load_dwordx4 v[{XR+4}:{XR+7}], v22, s[{sX}:{sX+3}], 0 offen offset:512", 'x')]
    tch = [f"s_lshr_b32 s58, s{sTT}, 3",
           f"s_cmp_eq_u32 s58, 0",
           f"s_cselect_b32 s{sTch}, s40, s42", f"s_cselect_b32 s{sTch+1}, s41, s43",
           f"s_mov_b32 s{sTch+2}, {hex(512*4096*2)}", f"s_mov_b32 s{sTch+3}, 0x00020000",
           f"s_lshl_b32 s59, s{sW_}, 19",
           f"s_add_u32 s59, s59, s{sH256}",
           f"s_bitcmp0_b32 s58, 0",
           f"s_cselect_b32 s62, {hex(256*8192)}, 0", f"s_add_u32 s59, s59, s62",
           f"s_cmp_eq_u32 s58, 0", f"s_cselect_b32 s62, 128, 0", f"s_add_u32 s59, s59, s62",
           f"s_cmp_eq_u32 s58, 3", f"s_cselect_b32 s62, 128, 0", f"s_add_u32 s59, s59, s62",
           f"v_lshlrev_b32 v21, 13, v{vL}",
           ('vm', f"buffer_load_dword v{vDum}, v21, s[{sTch}:{sTch+3}], s59 offen", 'tch'),
           f"s_lshl_b32 s59, s58, 2", f"s_add_u32 s59, s59, s{sW_}", f"s_lshl_b32 s59, s59, 17",
           f"s_add_u32 s59, s59, {hex(256*8192 + 128)}", f"s_add_u32 s59, s59, s{sH256}",
           f"v_and_b32 v21, 15, v{vL}", f"v_lshlrev_b32 v21, 13, v21",
           ('vm', f"buffer_load_dword v{vDum}, v21, s[{sWUV}:{sWUV+3}], s59 offen", 'tch')]
    if 'notouch' in OPT: tch = []
    k.e("s_getpc_b64 s[56:57]")
    k.label("L_k1_pc")
    k.e("s_sub_u32 s56, s56, L_k1_pc-kv_kernel")
    k.e("s_subb_u32 s57, s57, 0")
    k.e(f"s_cmp_lt_u32 s{sTT}, (L_text_end-kv_kernel)/8192")
    k.e("s_cbranch_scc0 L_k1_nocode")
    k.e(f"s_cmp_eq_u32 s{sW_}, 0")
    k.e("s_cbranch_scc0 L_k1_nocode")
    k.e(f"s_lshl_b32 s{sT}, s{sTT}, 13")
    k.e(f"v_lshlrev_b32 v21, 7, v{vL}")
    k.e(f"v_add_u32 v21, s{sT}, v21")
    k.e(f"global_load_dword v38, v21, s[56:57]")
    k.e(f"s_waitcnt vmcnt(0)") if False else None
    k.label("L_k1_nocode")
    CODE_SLACK = True
    ln = []
    e = ln.append
    e(f"v_lshrrev_b32 v30, 5, v25"); e(f"v_lshlrev_b32 v30, 15, v30"); e(f"v_lshrrev_b32 v31, 1, v24")
    e(f"v_lshl_add_u32 v30, v31, 10, v30"); e(f"v_and_b32 v31, 1, v24"); e(f"v_lshlrev_b32 v31, 5, v31")
    e(f"v_and_b32 v32, 31, v25"); e(f"v_add_u32 v31, v31, v32"); e(f"v_lshl_add_u32 v33, v31, 4, v30")
    e(('wvm', 'x'))
    for j in range(8):
        e(f"v_lshlrev_b32 v{X+2*j}, 16, v{XR+j}"); e(f"v_and_b32 v{X+2*j+1}, 0xffff0000, v{XR+j}")
    def allreduce(r, t):
        for rot in (8, 4, 2, 1):
            e("s_nop 1"); e(f"v_add_f32_dpp v{r}, v{r}, v{r} row_ror:{rot} row_mask:0xf bank_mask:0xf")
        e(('lg', f"ds_swizzle_b32 v{t}, v{r} offset:0x401F", 'swz')); e(('wlg', 'swz')); e(f"v_add_f32 v{r}, v{r}, v{t}")
    e(f"v_add_f32 v34, v{X}, v{X+1}")
    for j in range(2, 16): e(f"v_add_f32 v34, v34, v{X+j}")
    allreduce(34, 35)
    e(f"v_mul_f32 v34, 0x3b000000, v34")
    e(f"v_sub_f32 v36, v{X}, v34"); e(f"v_mul_f32 v37, v36, v36")
    for j in range(1, 16):
        e(f"v_sub_f32 v36, v{X+j}, v34"); e(f"v_fmac_f32 v37, v36, v36")
    allreduce(37, 35)
    e(f"v_mul_f32 v37, 0x3b000000, v37")
    e(f"v_cvt_pk_bf16_f32 v34, v34, v34"); e(f"v_cvt_pk_bf16_f32 v37, v37, v37")
    e(f"v_lshlrev_b32 v34, 16, v34"); e(f"v_lshlrev_b32 v37, 16, v37")
    e(f"v_add_f32 v37, 0x3727c5ac, v37"); e(f"v_cvt_pk_bf16_f32 v37, v37, v37"); e(f"v_lshlrev_b32 v37, 16, v37")
    e(f"v_sqrt_f32 v37, v37"); e("s_nop 0"); e(f"v_cvt_pk_bf16_f32 v37, v37, v37"); e(f"v_lshlrev_b32 v37, 16, v37")
    e(f"v_rcp_f32 v37, v37"); e("s_nop 0"); e(f"v_mul_f32 v37, {QSCALE_HEX}, v37")
    for j in range(16): e(f"v_sub_f32 v{X+j}, v{X+j}, v34")
    for j in range(8): e(f"v_cvt_pk_bf16_f32 v{XR+j}, v{X+2*j}, v{X+2*j+1}")
    for j in range(8):
        e(f"v_lshlrev_b32 v{X+2*j}, 16, v{XR+j}"); e(f"v_and_b32 v{X+2*j+1}, 0xffff0000, v{XR+j}")
    for j in range(16): e(f"v_mul_f32 v{X+j}, v{X+j}, v37")
    for j in range(8): e(f"v_cvt_pk_bf16_f32 v{XR+j}, v{X+2*j}, v{X+2*j+1}")
    e(f"s_mov_b32 s58, {hex(XN_OFF)}"); e(f"s_mov_b32 s59, {hex(XN_OFF+16384)}")
    e(('vm', f"buffer_store_dwordx4 v[{XR}:{XR+3}], v33, s[{sWS}:{sWS+3}], s58 offen", 'xs'))
    e(('vm', f"buffer_store_dwordx4 v[{XR+4}:{XR+7}], v33, s[{sWS}:{sWS+3}], s59 offen", 'xs'))
    wq_t = [f"s_lshl_b32 s58, s{sTT}, 2", f"s_add_u32 s58, s58, s{sW_}", f"s_lshr_b32 s59, s58, 5", f"s_and_b32 s58, s58, 31",
            f"s_lshl_b32 s58, s58, 17", f"s_and_b32 s62, s2, 7", f"s_lshl_b32 s62, s62, 2", f"s_add_u32 s59, s59, s62", f"s_lshl_b32 s59, s59, 8",
            f"s_add_u32 s58, s58, s59",
            f"v_bfe_u32 v21, v{vL}, 1, 4", f"v_lshlrev_b32 v21, 13, v21", f"v_and_b32 v38, 1, v{vL}", f"v_lshl_add_u32 v21, v38, 7, v21",
            ('vm', f"buffer_load_dword v{vDum}, v21, s[{sWQ}:{sWQ+3}], s58 offen", 'tch')]
    def wf(g, dt): return WF + (g % 4) * 8 + dt * 4
    def cf(i, s): return (i * 32 + s) * 4
    def wreads(g):
        m, sp = g // 8, g % 8
        base = sp * 2048
        its = []
        for dt in range(2):
            a = vWr0 if dt == 0 else vWr1
            r = wf(g, dt)
            its.append(('lg', f"ds_read_b64_tr_b16 v[{r}:{r+1}], v{a} offset:{base}", ('w', g)))
            its.append(('lg', f"ds_read_b64_tr_b16 v[{r+2}:{r+3}], v{a} offset:{base+512}", ('w', g)))
        return its
    def creads(q):
        its = []
        for sp in range(8):
            for i in range(2):
                n = 2 * q + i
                r = cf(i, 8 * q + sp)
                its.append(('lg', f"ds_read_b128 a[{r}:{r+3}], v{vCr[sp]} offset:{(n%3)*8192}", ('c', q)))
        return its
    def epilogue_items(p):
        acc = ACC[p % 2]; P = p % 2
        grp = []
        t_i = 0
        for i in range(2):
            for dt in range(2):
                a = acc + (i * 2 + dt) * 16
                dtg = 2 * P + dt
                for u in range(2):
                    pk = PK + (t_i % 4) * 4; t_i += 1
                    g = [f"v_cvt_pk_bf16_f32 v{pk+j}, v{a+8*u+2*j}, v{a+8*u+2*j+1}" for j in range(4)]
                    f = (2 * dtg + u) if p < 2 else (8 + u * 4 + dtg)
                    skv = sKV0 if i == 0 else sKV1
                    st = []
                    if f // 4:
                        st.append(f"s_add_u32 s{sT2}, s{skv}, {(f//4)*4096}"); so = sT2
                    else: so = skv
                    off = f" offset:{(f%4)*1024}" if f % 4 else ""
                    st.append(('vm', f"buffer_store_dwordx4 v[{pk}:{pk+3}], v{vL16}, s[{sWS}:{sWS+3}], s{so} offen{off}{STF}", 'st') if 'nost' not in OPT else "s_nop 0")
                    grp.append((g, st))
        return grp
    def wvm(tags):
        k.wait_vm(tags)
    stampt()
    k.wait_vm([('W', 0), ('C', 0), ('C', 1)])
    stampt()
    k.e("s_barrier")
    k.items(creads(0))
    for g in range(3): k.items(wreads(g))
    NG = 128
    lnpos = 0
    pend = []
    DM = {}
    def plan_w(mm, g0, stride=1):
        gr = groups(dma_w(mm))
        pre_ = gr[0][:-1]
        for jj in range(4): DM.setdefault(g0 + jj * stride, []).extend(pre_ + [gr[jj][-1]])
    def plan_c(n, g0, per_step):
        its = dma_c(n)
        for hi in range(2):
            part = its[hi * 7:(hi + 1) * 7]
            for jj in range(4):
                DM.setdefault(g0 + (hi * 4 + jj) // per_step, []).extend(part[:3] + [part[3 + jj]])
    plan_c(3, 0, 4); plan_w(2, 2); plan_c(4, 6, 1)
    plan_w(3, 5); plan_w(4, 14); plan_c(5, 17, 2); plan_w(5, 21); plan_c(6, 25, 1); plan_w(6, 29); plan_c(7, 33, 2)
    plan_w(7, 37); plan_w(8, 45); plan_w(9, 53); plan_w(10, 57); plan_w(11, 61); plan_w(12, 65); plan_w(13, 69); plan_w(14, 77); plan_w(15, 85)
    CQ = {0: 0, 2: 1, 4: 2, 6: 3}
    for g in range(NG):
        m, sp = g // 8, g % 8
        p, q = CH[m]
        s = 8 * q + sp
        gaps = [[], [], [], []]
        pre = []
        mn = (g + 3) // 8
        if (g + 3) % 8 == 0 and g + 3 < NG:
            tags = [('W', mn)]
            if mn in CQ: tags += [('C', 2 * CQ[mn]), ('C', 2 * CQ[mn] + 1)]
            if 'pstamp' in OPT and PS0 <= mn < PS0 + 5: pre.append(('fn', stampt))
            pre.append(('wvm', tags))
            if 'pstamp' in OPT and PS0 <= mn < PS0 + 5: pre.append(('fn', stampt))
            pre.append("s_barrier")
            d = (SLOT[mn] - SLOT[mn-1]) * 16384
            pre += [f"v_add_u32 v{vWr0}, {hex(d & 0xffffffff)}, v{vWr0}", f"v_add_u32 v{vWr1}, {hex(d & 0xffffffff)}, v{vWr1}"]
        tg = [('w', g)]
        if m in CQ and sp == 0: tg.append(('c', CQ[m]))
        pre.append(('wlg', tg))
        if g + 3 < NG:
            for j, it in enumerate(wreads(g + 3)): gaps[j].append(it)
        if sp >= 5 and (m + 1) in CQ:
            cr = creads(CQ[m + 1])
            lo = (sp - 5) * 16 // 3; hi = (sp - 4) * 16 // 3
            for j, it in enumerate(cr[lo:hi]): gaps[j % 4].append(it)
        dm = list(DM.get(g, []))
        if g == 100: dm = dm + wq_t
        if g == 4: dm = dm + xl
        grps = groups(dm)
        for j, grp in enumerate(grps): gaps[j * 4 // len(grps)] += grp
        ep = None
        if m == 7: ep = (0, sp, True)
        elif 8 <= m < 16:
            pe = 1 if m < 12 else 2
            gg = g - (64 if m < 12 else 96)
            if gg >= 1 and (gg - 1) % 4 < 2 and (gg - 1) // 4 < 8: ep = (pe, gg, False)
        if ep and ep[2]:
            grp = epilogue_items(0)[sp]
            gaps[0].append(grp[0][0]); gaps[1].append(grp[0][1]); gaps[2].append(grp[0][2]); gaps[3].append(grp[0][3]); post_st = grp[1]
        else: post_st = None
        if ep and not ep[2]:
            gg = ep[1]
            grp = epilogue_items(ep[0])[(gg - 1) // 4]
            if (gg - 1) % 4 == 0:
                gaps[1].append(grp[0][0]); gaps[3].append(grp[0][1])
            else:
                gaps[0].append(grp[0][2]); gaps[1].append(grp[0][3]); gaps[3] += grp[1]
        if 16 <= g < 56 and sp < 5 and lnpos < len(ln):
            for gp in range(4):
                gaps[gp] += ln[lnpos:lnpos + 2]; lnpos += 2
        k.items(pre)
        if 'pstamp' not in OPT and sp == 0 and m in (0, 2, 4, 6, 8, 12): stampt()
        acc = ACC[p % 2]
        n = 0
        for dt in range(2):
            for i in range(2):
                a = acc + (i * 2 + dt) * 16
                c = "0" if s == 0 else f"v[{a}:{a+15}]"
                w = f"v[{wf(g,dt)}:{wf(g,dt)+3}]"; cc = f"a[{cf(i,s)}:{cf(i,s)+3}]"
                if p < 2: k.e(f"v_mfma_f32_32x32x16_bf16 v[{a}:{a+15}], {w}, {cc}, {c}")
                else:     k.e(f"v_mfma_f32_32x32x16_bf16 v[{a}:{a+15}], {cc}, {w}, {c}")
                k.items(gaps[n]); n += 1
        if post_st: k.items(post_st)
    assert lnpos >= len(ln), (lnpos, len(ln))
    stampt()
    k.e("s_nop 7"); k.e("s_nop 3")
    for grp in epilogue_items(3):
        k.items(grp[0]); k.items(grp[1])
    if prof:
        k.e("s_waitcnt vmcnt(0)")
        k.e("s_memrealtime s[62:63]")
        k.e("s_waitcnt lgkmcnt(0)")
        prof_store(k, 0, sWS, sW_)
        if prof >= 2:
            stampt()
            prof_dump(k, 0, sWS, sW_, nst[0])
    k.label("L_k1_end")
    k.e("s_endpgm")
    errs = check_hazards(k.lines, "k1")
    return k, errs

PROF_OFF = 0x8000000
def prof_store(k, kidx, sWS, sWave, lo=60, hi=62):
    k.e(f"s_lshl_b32 s64, s2, 4")
    k.e(f"s_add_u32 s64, s64, s{sWave}")
    k.e(f"s_lshl_b32 s64, s64, 3")
    k.e(f"s_add_u32 s64, s64, {hex(PROF_OFF + kidx*65536)}")
    k.e(f"v_mov_b32 v60, s{lo}")
    k.e(f"v_mov_b32 v61, s{hi}")
    k.e(f"v_mov_b32 v62, 0")
    k.e(f"buffer_store_dwordx2 v[60:61], v62, s[{sWS}:{sWS+3}], s64 offen")


def prof_dump(k, kidx, sWS, sWave, n):
    k.e(f"s_lshl_b32 s64, s2, 4")
    k.e(f"s_add_u32 s64, s64, s{sWave}")
    k.e(f"s_lshl_b32 s64, s64, 6")
    k.e(f"s_add_u32 s64, s64, {hex(PROF_OFF + 0x100000 + kidx*0x40000)}")
    k.e(f"v_mov_b32 v62, 0")
    for i in range(n):
        k.e(f"v_mov_b32 v60, s{66+2*i}")
        k.e(f"buffer_store_dword v60, v62, s[{sWS}:{sWS+3}], s64 offen offset:{4*i}")
        k.e("s_nop 1")


if __name__ == "__main__":
    k, errs = gen_k1()
    print(len(k.lines), "lines;", len(errs), "hazards")
    for e in errs[:40]: print(e)
```

```python
from fw import *
from common import *
from sched import *
from k1 import prof_store, prof_dump
import os, math
LDS = 163840
OPT = os.environ.get('K2OPT', '').split(',')

def gen_k2(prof=0):
    k = K("k2")
    vL16, vKa, vVa, vl, vT0, vT1, vInf = 1, 2, 3, 4, 6, 7, 8
    LA = [9, 10]; LB = [11, 12]; vLT = 13
    S = [16, 32]; NEGM = 48; O = 64; Q = 128; FR = 160; P = [192, 200]; E = 208
    XN = 128; WR = 16
    vWq = [2, 3, 4, 5]; vQr = [6, 7, 8, 9]
    sWS, sWQ = 4, 8
    sWv, sWq, sH, sJ, sQT, sCnt, sTt, sTn, sKo, sT, sT2, sVo, sM0K, sGrp = 12, 13, 14, 15, 16, 17, 18, 19, 20, 21, 22, 23, 24, 25
    sThr, sCtx, sXo = 26, 28, 29
    sKmax, sVmax = 30, 31
    sMask = 32
    nst = [0]
    def stampt():
        if prof >= 2:
            r = 66 + 2 * nst[0]; nst[0] += 1
            k.e(f"s_memtime s[{r}:{r+1}]"); k.e("s_waitcnt lgkmcnt(0)")
    k.e("s_cmp_ge_u32 s2, 256")
    k.e("s_cbranch_scc1 L_k2_end")
    if prof: k.e("s_memrealtime s[98:99]")
    stampt()
    k.e("s_load_dwordx2 s[64:65], s[0:1], 16")
    k.e("s_load_dwordx2 s[30:31], s[0:1], 96")
    k.e("s_load_dwordx2 s[84:85], s[0:1], 40")
    k.e("s_load_dwordx4 s[88:91], s[0:1], 56")
    k.e("s_load_dwordx2 s[86:87], s[0:1], 72")
    k.e(f"v_and_b32 v14, 63, v0")
    k.e(f"v_lshrrev_b32 v15, 6, v0")
    k.e(f"v_lshlrev_b32 v{vL16}, 4, v14")
    k.e(f"v_readfirstlane_b32 s{sWv}, v15")
    k.e(f"s_and_b32 s{sT}, s2, 7")
    k.e(f"s_lshr_b32 s{sT2}, s2, 3")
    k.e(f"s_lshl_b32 s{sH}, s{sT}, 2")
    k.e(f"s_and_b32 s{sT}, s{sT2}, 3")
    k.e(f"s_add_u32 s{sH}, s{sH}, s{sT}")
    k.e(f"s_lshr_b32 s{sJ}, s{sT2}, 2")
    k.e(f"v_lshrrev_b32 v10, 4, v14")
    k.e(f"v_and_b32 v11, 15, v14")
    k.e(f"v_lshlrev_b32 v12, 2, v10")
    k.e(f"v_xor_b32 v12, v12, v11")
    k.e(f"v_lshlrev_b32 v12, 4, v12")
    k.e(f"v_lshl_add_u32 v12, v10, 13, v12")
    k.e(f"s_lshl_b32 s{sT}, s{sWv}, 17")
    k.e(f"v_add_u32 v{vWq[0]}, s{sT}, v12")
    for j in range(1, 4): k.e(f"v_add_u32 v{vWq[j]}, {hex(j*(4*8192-1024))}, v{vWq[0]}")
    k.e(f"s_and_b32 s{sWq}, s{sWv}, 3")
    k.e(f"s_lshr_b32 s{sGrp}, s{sWv}, 2")
    k.e(f"s_sub_u32 s{sT}, 15, s{sJ}")
    k.e(f"s_cmp_eq_u32 s{sGrp}, 0")
    k.e(f"s_cselect_b32 s{sT2}, s{sT}, s{sJ}")
    k.e(f"s_lshl_b32 s{sQT}, s{sT2}, 2")
    k.e(f"s_add_u32 s{sQT}, s{sQT}, s{sWq}")
    k.e(f"s_add_u32 s{sTt}, s{sT}, 1")
    k.e(f"s_lshl_b32 s{sTt}, s{sTt}, 1")
    k.e(f"s_lshl_b32 s{sXo}, s{sQT}, 15")
    k.e(f"s_add_u32 s{sXo}, s{sXo}, {hex(XN_OFF)}")
    k.e("s_waitcnt lgkmcnt(0)")
    srd(k, sWQ, 64, 512*4096*2)
    srd(k, sWS, 30, WS_SIZE)
    CB = [131072, 65536, 98304, 131072]
    def dma_wq(n):
        its = [f"s_lshl_b32 s{sT}, s{sH}, 8",
               f"s_add_u32 s{sT}, s{sT}, {hex(n*128*8192)}",
               f"s_lshl_b32 s{sT2}, s{sWv}, 12",
               f"s_add_u32 m0, s{sT2}, {hex(CB[n])}", "s_nop 0"]
        for j in range(4):
            off = f" offset:{j*1024}" if j else ""
            its.append(('vm', f"buffer_load_dwordx4 v{vWq[j]}, s[{sWQ}:{sWQ+3}], s{sT} offen{off} lds", ('WQ', n)))
        return its
    def xn_load(s):
        its = []
        if s % 4 == 0 and s: its.append(f"s_add_u32 s{sXo}, s{sXo}, 4096")
        off = f" offset:{(s%4)*1024}" if s % 4 else ""
        its.append(('vm', f"buffer_load_dwordx4 v[{XN+4*s}:{XN+4*s+3}], v{vL16}, s[{sWS}:{sWS+3}], s{sXo} offen{off}", ('xn', s)))
        return its
    k.items(dma_wq(0))
    for s in range(4): k.items(xn_load(s))
    sKVp = 27
    k.e(f"s_lshl_b32 s{sKo}, s{sH}, 20")
    k.e(f"s_add_u32 s{sKo}, s{sKo}, {hex(KV_OFF)}")
    k.e(f"s_lshl_b32 s{sT}, s{sGrp}, 14")
    k.e(f"s_add_u32 s{sKVp}, s{sKo}, s{sT}")
    k.e(f"s_lshl_b32 s{sT}, s{sWq}, 11")
    k.e(f"s_add_u32 s{sKVp}, s{sKVp}, s{sT}")
    def dma_p(tile, isv):
        lds = tile * 32768 + (16384 if isv else 0)
        its = [f"s_lshl_b32 s{sT2}, s{sWv}, 11", f"s_add_u32 m0, s{sT2}, {lds}",
               f"s_add_u32 s{sT}, s{sKVp}, {tile*32768 + (8192 if isv else 0)}"]
        for j in range(2):
            off = f" offset:{j*1024}" if j else ""
            its.append(('vm', f"buffer_load_dwordx4 v{vL16}, s[{sWS}:{sWS+3}], s{sT} offen{off} lds", 'P'))
        return its
    k.e(f"s_lshr_b32 s{sT}, s{sWq}, 1")
    k.e(f"s_lshl_b32 s{sT}, s{sT}, 14")
    k.e(f"s_add_u32 s{sKo}, s{sKo}, s{sT}")
    k.e(f"s_and_b32 s{sT}, s{sWq}, 1")
    k.e(f"s_lshl_b32 s{sT}, s{sT}, 12")
    k.e(f"s_add_u32 s{sKo}, s{sKo}, s{sT}")
    k.e(f"s_sub_u32 s{sT}, s{sTt}, 1")
    k.e(f"s_lshl_b32 s{sT}, s{sT}, 15")
    k.e(f"s_add_u32 s{sKmax}, s{sKo}, s{sT}")
    k.e(f"s_add_u32 s{sVmax}, s{sKmax}, 8192")
    k.e(f"s_add_u32 s{sVo}, s{sKo}, {32768 + 8192}")
    k.e(f"s_add_u32 s{sKo}, s{sKo}, {2*32768}")
    k.e(f"s_lshl_b32 s{sM0K}, s{sWq}, 12")
    k.e(f"s_add_u32 s{sM0K}, s{sM0K}, {2*32768}")
    k.e(f"s_lshl_b32 s{sCtx}, s{sQT}, 5")
    k.e(f"s_add_u32 s{sCtx}, s{sCtx}, s{sH}")
    k.e(f"s_lshl_b32 s{sCtx}, s{sCtx}, 13")
    k.e(f"s_add_u32 s{sCtx}, s{sCtx}, {hex(CTX_OFF)}")
    k.e(f"v_lshrrev_b32 v12, 5, v14")
    k.e(f"v_lshrrev_b32 v13, 2, v11")
    k.e(f"v_lshl_add_u32 v15, v12, 3, v13")
    k.e(f"v_lshlrev_b32 v15, 8, v15")
    k.e(f"v_and_b32 v10, 1, v10")
    k.e(f"v_lshlrev_b32 v10, 1, v10")
    k.e(f"v_bfe_u32 v{vQr[1]}, v11, 1, 1")
    k.e(f"v_add_u32 v10, v10, v{vQr[1]}")
    k.e(f"v_lshlrev_b32 v13, 2, v13")
    k.e(f"v_xor_b32 v10, v10, v13")
    k.e(f"v_lshl_add_u32 v15, v10, 4, v15")
    k.e(f"v_and_b32 v13, 1, v11")
    k.e(f"v_lshl_add_u32 v10, v13, 3, v15")
    k.e(f"v_and_b32 v13, 31, v14")
    k.e(f"v_lshlrev_b32 v12, 2, v12")
    k.e(f"v_sub_u32 v13, v13, v12")
    for r in range(16):
        k.e(f"v_cmp_lt_i32 s[{sMask+2*r}:{sMask+2*r+1}], v13, {8*(r//4)+r%4}")
    k.e(f"s_mov_b32 s{sThr}, 0x47800000")
    def set_qr(n):
        its = []
        for dt in range(4): its += [f"v_xor_b32 v15, {dt*64}, v10", f"v_add_u32 v{vQr[dt]}, {hex(CB[n])}, v15"]
        return its
    def wr(g, dt): return WR + (g % 3) * 16 + dt * 4
    def wreads(g):
        sp = g % 8
        its = []
        for dt in range(4):
            r = wr(g, dt)
            its.append(('lg', f"ds_read_b64_tr_b16 v[{r}:{r+1}], v{vQr[dt]} offset:{sp*4096}", ('w', g)))
            its.append(('lg', f"ds_read_b64_tr_b16 v[{r+2}:{r+3}], v{vQr[dt]} offset:{sp*4096+1024}", ('w', g)))
        return its
    k.items(set_qr(0))
    for s in range(4, 8): k.items(xn_load(s))
    k.items(dma_wq(1))
    stampt()
    k.wait_vm([('WQ', 0), ('xn', 3)])
    k.e("s_barrier")
    k.items(wreads(0)); k.items(wreads(1))
    stampt()
    def groups(items):
        grps = []; j = 0
        while j < len(items):
            grp = []
            while j < len(items) and isinstance(items[j], str): grp.append(items[j]); j += 1
            if j < len(items): grp.append(items[j]); j += 1
            grps.append(grp)
        return grps
    extra = {}
    def add(g, gap, its): extra.setdefault((g, gap), []).extend(its)
    for s in range(8, 32): add(s - 8, 0, xn_load(s))
    def put(items, g0):
        for j, grp in enumerate(groups(items)): add(g0 + j // 2, 1 + 2 * (j % 2), grp)
    put(dma_wq(2), 1)
    put(dma_p(0, False), 4)
    put(dma_wq(3), 14)
    put(dma_p(0, True), 18)
    put(dma_p(1, False), 20)
    for g in range(32):
        n, sp = g // 8, g % 8
        gaps = [[], [], [], []]
        pre = []
        if sp == 6 and n < 3:
            nn = n + 1
            pre.append(('wvm', [('WQ', nn)]))
            pre.append("s_barrier")
            pre += set_qr(nn)
        if g % 4 == 0 and g: pre.append(('wvm', [('xn', g + 3)]))
        pre.append(('wlg', ('w', g)))
        if g + 2 < 32:
            rd = wreads(g + 2)
            for j, it in enumerate(rd): gaps[j // 2].append(it)
        for gap in range(4): gaps[gap] += extra.get((g, gap), [])
        k.items(pre)
        for dt in range(4):
            a = O + dt * 16
            c = "0" if g == 0 else f"v[{a}:{a+15}]"
            k.e(f"v_mfma_f32_32x32x16_bf16 v[{a}:{a+15}], v[{wr(g,dt)}:{wr(g,dt)+3}], v[{XN+4*g}:{XN+4*g+3}], {c}")
            k.items(gaps[dt])
    stampt()
    k.e("s_waitcnt vmcnt(0)")
    k.e("s_barrier")
    k.e(f"v_mov_b32 v{vKa}, v{vL16}")
    k.e(f"v_mov_b32 v{vVa}, v{vL16}")
    def kread(sub, ds): return f"ds_read_b128 v[{FR+4*ds}:{FR+4*ds+3}], v{vKa} offset:{sub*8192+ds*1024}"
    def vread(sub, f, a=None): return f"ds_read_b128 v[{FR+4*f}:{FR+4*f+3}], v{a if a else vVa} offset:{16384+sub*8192+f*1024}"
    for ds in range(8): k.e(kread(0, ds))
    def loader_dma():
        its = [f"s_mov_b32 m0, s{sM0K}", f"s_min_u32 s{sT2}, s{sKo}, s{sKmax}"]
        for j in range(4):
            off = f" offset:{j*1024}" if j else ""
            its.append(('vm', f"buffer_load_dwordx4 v{vL16}, s[{sWS}:{sWS+3}], s{sT2} offen{off} lds", 'K'))
        its += [f"s_add_u32 s{sT}, s{sM0K}, {0x20000 - 32768 + 16384}", f"s_and_b32 m0, s{sT}, 0x1ffff",
                f"s_add_u32 s{sM0K}, s{sM0K}, 32768", f"s_min_u32 s{sT}, s{sVo}, s{sVmax}"]
        for j in range(4):
            off = f" offset:{j*1024}" if j else ""
            its.append(('vm', f"buffer_load_dwordx4 v{vL16}, s[{sWS}:{sWS+3}], s{sT} offen{off} lds", 'V'))
        its += [f"s_and_b32 s{sM0K}, s{sM0K}, 0x1ffff", f"s_add_u32 s{sKo}, s{sKo}, 32768", f"s_add_u32 s{sVo}, s{sVo}, 32768",
                f"s_add_u32 s{sTn}, s{sTn}, 1"]
        return its
    k.e(f"s_mov_b32 s{sTn}, 0")
    k.e(f"s_cmp_eq_u32 s{sGrp}, 0")
    k.e("s_cbranch_scc1 L_k2_nol0")
    k.items(loader_dma())
    k.e(f"s_lshl_b32 s{sT}, s2, 2")
    k.e(f"s_add_u32 s{sT}, s{sT}, s{sWq}")
    k.e(f"s_mov_b32 s92, s84"); k.e(f"s_mov_b32 s93, s85"); k.e(f"s_mov_b32 s94, {hex(4096*512*2)}"); k.e(f"s_mov_b32 s{sT2}, 0")
    for lim, lo in ((512, 88), (684, 90), (856, 86)):
        k.e(f"s_cmp_ge_u32 s{sT}, {lim}")
        k.e(f"s_cselect_b32 s92, s{lo}, s92"); k.e(f"s_cselect_b32 s93, s{lo+1}, s93")
        k.e(f"s_cselect_b32 s94, {hex(512*1376*2)}, s94"); k.e(f"s_cselect_b32 s{sT2}, {lim}, s{sT2}")
    k.e(f"s_mov_b32 s95, 0x00020000")
    k.e(f"s_sub_u32 s{sT}, s{sT}, s{sT2}")
    k.e(f"s_lshl_b32 s{sT}, s{sT}, 13")
    k.e(f"v_lshlrev_b32 v5, 3, v{vL16}")
    if 'notouch' not in OPT: k.e(f"buffer_load_dword v5, v5, s[92:95], s{sT} offen")
    k.label("L_k2_nol0")
    for dt in range(4):
        for u in range(2):
            for j in range(4):
                k.e(f"v_cvt_pk_bf16_f32 v{Q+(2*dt+u)*4+j}, v{O+dt*16+8*u+2*j}, v{O+dt*16+8*u+2*j+1}")
    k.e(f"v_mov_b32 v{vl}, 0")
    k.e(f"v_mov_b32 v{vInf}, 0xff800000")
    k.e(f"v_mov_b32 v{vLT}, 0")
    def qk(p, n, first0=False):
        c = ("0" if first0 else f"v[{NEGM}:{NEGM+15}]") if n == 0 else f"v[{S[p]}:{S[p]+15}]"
        return f"v_mfma_f32_32x32x16_bf16 v[{S[p]}:{S[p]+15}], v[{FR+4*n}:{FR+4*n+3}], v[{Q+4*n}:{Q+4*n+3}], {c}"
    def pv(p, f):
        ks, dt = f // 4, f % 4
        a = O + 16 * dt
        return f"v_mfma_f32_32x32x16_bf16 v[{a}:{a+15}], v[{FR+4*f}:{FR+4*f+3}], v[{P[p]+4*ks}:{P[p]+4*ks+3}], v[{a}:{a+15}]"
    k.e("s_waitcnt lgkmcnt(0)")
    for n in range(8):
        k.e(qk(0, n, True))
        k.e(kread(1, n))
        for r in range(8): k.e(f"v_mov_b32 v{O+8*n+r}, 0")
    def mask(p):
        return [f"v_cndmask_b32 v{S[p]+r}, v{S[p]+r}, v{vInf}, s[{sMask+2*r}:{sMask+2*r+1}]" for r in range(16)]
    k.e("s_nop 3")
    k.e(f"s_cmp_lg_u32 s{sQT}, 0")
    k.e("s_cbranch_scc1 L_k2_nomask0")
    k.items(mask(0))
    k.label("L_k2_nomask0")
    def rowmax(p, dst):
        its = [f"v_max3_f32 v{dst}, v{S[p]}, v{S[p]+1}, v{S[p]+2}"]
        for r in range(3, 15, 2): its.append(f"v_max3_f32 v{dst}, v{dst}, v{S[p]+r}, v{S[p]+r+1}")
        its.append(f"v_max_f32 v{dst}, v{dst}, v{S[p]+15}")
        its += [f"v_mov_b32 v{vT1}, v{dst}", "s_nop 1", f"v_permlane32_swap_b32 v{dst}, v{vT1}", "s_nop 1", f"v_max_f32 v{dst}, v{dst}, v{vT1}"]
        return its
    k.items(rowmax(0, vT0))
    for r in range(16): k.e(f"v_sub_f32 v{S[0]+r}, v{S[0]+r}, v{vT0}")
    for r in range(16): k.e(f"v_sub_f32 v{NEGM+r}, 0, v{vT0}")
    k.e(f"s_sub_u32 s{sCnt}, s{sQT}, 1")
    stampt()
    def sm_items(p, with_ladd=True):
        s = S[p]; la, lb = LA[p], LB[p]
        it = []
        for i in range(16):
            deps = []
            if i >= 8:
                deps.append((f"A{i-8}" if (i-8) >= 2 else f"A{i-8+2}", 0)); deps.append((f"C{(i-8)//2}", 0))
            it.append(It(f"E{i}", 8, f"v_exp_f32 v{E+i%8}, v{s+i}", deps, prio=10))
        for i in range(2, 16):
            acc = la if i % 2 == 0 else lb
            deps = [(f"E{i}", 1)]
            if i < 4: deps.append((f"E{i-2}", 1)); t = f"v_add_f32 v{acc}, v{E+(i-2)%8}, v{E+i%8}"
            else: deps.append((f"A{i-2}", 0)); t = f"v_add_f32 v{acc}, v{acc}, v{E+i%8}"
            it.append(It(f"A{i}", 4, t, deps, prio=11))
        for j in range(8):
            it.append(It(f"C{j}", 4, f"v_cvt_pk_bf16_f32 v{P[p]+j}, v{E+(2*j)%8}, v{E+(2*j+1)%8}", [(f"E{2*j}", 1), (f"E{2*j+1}", 1)], prio=9))
        lt = [("A14", 0), ("A15", 0)]
        if with_ladd:
            it.append(It("LADD", 4, f"v_add_f32 v{vl}, v{vl}, v{vLT}", [], prio=1, latest=6))
            lt.append(("LADD", 0))
        it.append(It("LT", 4, f"v_add_f32 v{vLT}, v{la}, v{lb}", lt, prio=12))
        it.append(It("CMP", 4, f"v_cmp_nge_f32 vcc, s{sThr}, v{vLT}", [("LT", 0)], prio=12))
        return it
    def sm_seq(p, with_ladd=False, cmp=True):
        g = schedule([1000], [0], sm_items(p, with_ladd))
        out = []
        for t in g[0]:
            if t.startswith("v_cmp") and not cmp: continue
            out.append(t)
        return out
    slow_sites = []
    def check(p, tag, qk_done=True):
        k.e(f"s_cbranch_vccnz L_slow_{tag}")
        k.label(f"L_back_{tag}")
        slow_sites.append((p, tag, qk_done))
    addr_upd = [f"v_mov_b32 v{vVa}, v{vKa}", f"v_add_u32 v{vKa}, 32768, v{vKa}", f"v_and_b32 v{vKa}, 0x1ffff, v{vKa}"]
    def period(p, kind, loader, tag):
        pn = 1 - p
        even = (p == 0)
        sub_v = 1 if even else 0
        sub_k = 0 if even else 1
        bud = [16, 20, 16, 12] * 4
        if even: bud[7] = 0
        bud[15] = 0
        if kind == 'first': bud = [24, 24, 24, 20, 24, 24, 24, 0, 40, 40, 40, 40, 40, 40, 40, 40]
        g = schedule(bud, [2] * 16, sm_items(p))
        late = [[] for _ in range(16)]
        if even and loader:
            grps = groups(loader_dma())
            for j, grp in enumerate(grps): late[8 + j * 8 // len(grps)] += grp
        for n in range(16):
            if n % 4 == 0 and not (kind == 'first' and n >= 8):
                k.e("s_waitcnt lgkmcnt(4)" if not (kind == 'first' and n == 4) else "s_waitcnt lgkmcnt(0)")
            if n == 8 and even:
                if loader: k.e("s_waitcnt vmcnt(8)")
                if 'nobar' not in OPT or loader: k.e("s_barrier")
            if n < 8:
                k.e(qk(pn, n))
                if kind != 'first' and 'nods' not in OPT: k.e(vread(sub_v, n))
            else:
                if kind != 'first': k.e(pv(pn, n - 8))
                if 'nods' not in OPT: k.e(kread(sub_k, n - 8))
            if n == 7 and even: k.items(addr_upd)
            if 'nosm' not in OPT: k.items(g[n])
            k.items(late[n])
        if 'nochk' not in OPT: check(p, tag)
    def last(p, loader, tag):
        pn = 1 - p; even = (p == 0)
        sub_v = 1 if even else 0
        sub2 = 0 if even else 1
        a2 = vKa if even else vVa
        k.items(mask(p)) if not even else None
        if even:
            k.e(f"s_cmp_eq_u32 s{sQT}, 0")
            k.e(f"s_cbranch_scc1 L_only_{tag}")
            k.items(mask(p))
        for f in range(8): k.e(vread(sub_v, f))
        if even:
            if loader: k.e("s_waitcnt vmcnt(8)")
            k.e("s_barrier")
            if loader: k.items(loader_dma())
        g = schedule([28] * 7 + [1000], [2] * 8, sm_items(p))
        for f in range(8):
            if f % 4 == 0: k.e(f"s_waitcnt lgkmcnt(4)")
            k.e(pv(pn, f))
            k.e(vread(sub2, f, a2))
            k.items(g[f])
        if even:
            k.e(f"s_branch L_fin_{tag}")
            k.label(f"L_only_{tag}")
            if loader: k.e("s_waitcnt vmcnt(8)")
            k.e("s_barrier")
            if loader: k.items(loader_dma())
            for f in range(8): k.e(vread(sub2, f, a2))
            k.items(sm_seq(p, True))
            k.label(f"L_fin_{tag}")
        check(p, tag, qk_done=False)
        k.e(f"v_add_f32 v{vl}, v{vl}, v{vLT}")
        for f in range(8):
            if f % 4 == 0: k.e(f"s_waitcnt lgkmcnt({4 if f == 0 else 0})")
            k.e(pv(p, f))
    def epilogue():
        k.e(f"v_mov_b32 v{vT1}, v{vl}")
        k.e("s_nop 1")
        k.e(f"v_permlane32_swap_b32 v{vl}, v{vT1}")
        k.e("s_nop 1")
        k.e(f"v_add_f32 v{vl}, v{vl}, v{vT1}")
        k.e(f"v_rcp_f32 v{vl}, v{vl}")
        k.e("s_nop 7"); k.e("s_nop 3")
        for dt in range(4):
            for r in range(16): k.e(f"v_mul_f32 v{O+16*dt+r}, v{O+16*dt+r}, v{vl}")
            for u in range(2):
                ds = 2 * dt + u
                pk = E + 4 * (ds % 4) if ds < 4 else S[0] + 4 * (ds % 4)
                for j in range(4): k.e(f"v_cvt_pk_bf16_f32 v{pk+j}, v{O+16*dt+8*u+2*j}, v{O+16*dt+8*u+2*j+1}")
                if ds == 4: k.e(f"s_add_u32 s{sCtx}, s{sCtx}, 4096")
                off = f" offset:{(ds%4)*1024}" if ds % 4 else ""
                k.e(f"buffer_store_dwordx4 v[{pk}:{pk+3}], v{vL16}, s[{sWS}:{sWS+3}], s{sCtx} offen{off} sc1")
    k.e(f"s_cmp_eq_u32 s{sGrp}, 0")
    k.e("s_cbranch_scc0 L_grp_short")
    for loader in (False, True):
        G = "S" if loader else "L"
        if loader: k.label("L_grp_short")
        k.e(f"s_cmp_eq_u32 s{sQT}, 0")
        k.e(f"s_cbranch_scc1 L_last0_{G}")
        period(0, 'first', loader, f"f{G}")
        k.e(f"s_sub_u32 s{sCnt}, s{sCnt}, 1")
        k.e(f"s_cbranch_scc1 L_last1_{G}")
        k.e(".p2align 6")
        k.label(f"L_loop_{G}")
        period(1, 'mid', loader, f"o{G}")
        k.e(f"s_sub_u32 s{sCnt}, s{sCnt}, 1")
        k.e(f"s_cbranch_scc1 L_last0_{G}")
        period(0, 'mid', loader, f"e{G}")
        k.e(f"s_sub_u32 s{sCnt}, s{sCnt}, 1")
        k.e(f"s_cbranch_scc0 L_loop_{G}")
        k.label(f"L_last1_{G}")
        last(1, loader, f"l1{G}")
        k.e(f"s_branch L_epi_{G}")
        k.label(f"L_last0_{G}")
        last(0, loader, f"l0{G}")
        k.label(f"L_epi_{G}")
        stampt() if not loader else None
        epilogue()
        if loader:
            k.label("L_ldr_loop")
            k.e(f"s_cmp_ge_u32 s{sTn}, s{sTt}")
            k.e("s_cbranch_scc1 L_ldr_fin")
            k.e("s_waitcnt vmcnt(8)")
            k.e("s_barrier")
            k.items(loader_dma())
            k.e("s_branch L_ldr_loop")
            k.label("L_ldr_fin")
            k.e("s_waitcnt vmcnt(0)")
            k.e("s_barrier")
            k.e(f"s_lshr_b32 s{sT}, s2, 3"); k.e(f"s_lshl_b32 s{sT}, s{sT}, 2"); k.e(f"s_add_u32 s{sT}, s{sT}, s{sWq}")
            k.e(f"s_lshl_b32 s{sT}, s{sT}, 15")
            k.e(f"s_and_b32 s{sT2}, s2, 1"); k.e(f"s_lshl_b32 s{sT2}, s{sT2}, 9"); k.e(f"s_add_u32 s{sT}, s{sT}, s{sT2}")
            k.e(f"v_lshrrev_b32 v5, 6, v{vL16}")
            k.e(f"v_lshlrev_b32 v5, 10, v5")
            k.e(f"v_bfe_u32 v6, v{vL16}, 4, 2")
            k.e(f"v_lshl_add_u32 v5, v6, 7, v5")
            k.e(f"s_mov_b32 s92, s84"); k.e(f"s_mov_b32 s93, s85"); k.e(f"s_mov_b32 s94, {hex(4096*512*2)}"); k.e(f"s_mov_b32 s95, 0x00020000")
            if 'nolate' not in OPT:
                k.e(f"buffer_load_dword v7, v5, s[92:95], s{sT} offen")
                k.e(f"s_add_u32 s{sT}, s{sT}, 16384")
                k.e(f"buffer_load_dword v7, v5, s[92:95], s{sT} offen")

        k.e("s_branch L_k2_fin")
    for p, tag, qk_done in slow_sites:
        k.label(f"L_slow_{tag}")
        k.e("s_nop 15"); k.e("s_nop 3")
        k.items(rowmax(p, vT0))
        k.e(f"v_max_f32 v{vT0}, 0, v{vT0}")
        k.e(f"v_sub_f32 v{vT1}, 0, v{vT0}")
        k.e(f"v_exp_f32 v{vT1}, v{vT1}")
        for r in range(16): k.e(f"v_sub_f32 v{NEGM+r}, v{NEGM+r}, v{vT0}")
        for r in range(16): k.e(f"v_sub_f32 v{S[p]+r}, v{S[p]+r}, v{vT0}")
        if qk_done:
            for r in range(16): k.e(f"v_sub_f32 v{S[1-p]+r}, v{S[1-p]+r}, v{vT0}")
        for r in range(64): k.e(f"v_mul_f32 v{O+r}, v{O+r}, v{vT1}")
        k.e(f"v_mul_f32 v{vl}, v{vl}, v{vT1}")
        for t in sm_seq(p, False, cmp=False): k.e(t)
        k.e("s_nop 7")
        k.e(f"s_branch L_back_{tag}")
    k.label("L_k2_fin")
    if prof:
        k.e("s_waitcnt vmcnt(0)")
        k.e("s_memrealtime s[100:101]")
        k.e("s_waitcnt lgkmcnt(0)")
        prof_store(k, 1, sWS, sWv, 98, 100)
        if prof >= 2:
            stampt()
            prof_dump(k, 1, sWS, sWv, nst[0])
    k.label("L_k2_end")
    k.e("s_endpgm")
    if 'e64' in OPT:
        for i, ln in enumerate(k.lines):
            for mn in ("v_exp_f32", "v_add_f32"):
                if ln.startswith(mn + " ") and "0x" not in ln: k.lines[i] = ln.replace(mn, mn + "_e64", 1)
    errs = check_hazards(k.lines, "k2")
    return k, errs

if __name__ == "__main__":
    k, errs = gen_k2()
    print(len(k.lines), "lines;", len(errs), "hazards")
    for e in errs[:60]: print(e)
```

```python
from fw import *
from common import *
from k1 import prof_store, prof_dump, groups
import os, struct
OPT = os.environ.get('K3OPT', '').split(',')

def skinny(kidx, name, mode, prof):
    k = K(name)
    L = name
    NS = 64 if mode == 'oproj' else 22
    R = 16; D = 15
    GS = 4
    vL16, vWa, vWb, vR0, vR1, vX = 1, 2, 3, 4, 5, 6
    ACC = 16
    BR = 80
    WF = 208
    RES = 224
    T = 232
    sWS, sW, sB, sRes = 4, 8, 12, 16
    sWv, sNT, sMT, sT, sT2, sBo0, sBo1, sWo, sM0, sCnt = 24, 25, 26, 27, 28, 29, 30, 31, 32, 33
    sPos, sBb, sWb = 44, 45, 46
    ROT = 'rot' in OPT
    BNT = ' nt' if ('bnt' in OPT) else ''
    nst = [0]
    def stampt():
        if prof >= 2:
            r = 66 + 2 * nst[0]; nst[0] += 1
            k.e(f"s_memtime s[{r}:{r+1}]"); k.e("s_waitcnt lgkmcnt(0)")
    k.e("s_cmp_ge_u32 s2, 256")
    k.e(f"s_cbranch_scc1 L_{L}_end")
    if prof: k.e("s_memrealtime s[98:99]")
    stampt()
    k.e(f"s_load_dwordx2 s[36:37], s[0:1], {ARG['wo'] if mode == 'oproj' else ARG['wd']}")
    k.e(f"s_load_dwordx2 s[38:39], s[0:1], {ARG['ws']}")
    k.e(f"s_load_dwordx2 s[40:41], s[0:1], {ARG['x'] if mode == 'oproj' else ARG['out']}")
    k.e("v_and_b32 v10, 63, v0")
    k.e("v_lshrrev_b32 v11, 6, v0")
    k.e(f"v_lshlrev_b32 v{vL16}, 4, v10")
    k.e(f"v_readfirstlane_b32 s{sWv}, v11")
    k.e(f"s_and_b32 s{sT}, s2, 7")
    k.e(f"s_lshr_b32 s{sT2}, s2, 3")
    k.e(f"s_and_b32 s{sNT}, s{sT2}, 7")
    k.e(f"s_lshr_b32 s{sT2}, s{sT2}, 3")
    k.e(f"s_lshl_b32 s{sMT}, s{sT}, 2")
    k.e(f"s_add_u32 s{sMT}, s{sMT}, s{sT2}")
    if mode == 'oproj' and 'map1' not in OPT:
        k.e(f"s_lshr_b32 s{sT2}, s2, 3")
        k.e(f"s_and_b32 s{sNT}, s{sT2}, 3")
        k.e(f"s_and_b32 s{sMT}, s{sT}, 1")
        k.e(f"s_lshl_b32 s{sMT}, s{sMT}, 2")
        k.e(f"s_add_u32 s{sNT}, s{sNT}, s{sMT}")
        k.e(f"s_lshr_b32 s{sMT}, s{sT}, 1")
        k.e(f"s_lshl_b32 s{sMT}, s{sMT}, 3")
        k.e(f"s_lshr_b32 s{sT2}, s{sT2}, 2")
        k.e(f"s_add_u32 s{sMT}, s{sMT}, s{sT2}")
    k.e("v_lshrrev_b32 v12, 3, v10")
    k.e("v_and_b32 v13, 7, v10")
    k.e("v_bfe_u32 v14, v10, 4, 1")
    k.e("v_lshlrev_b32 v14, 2, v14")
    k.e("v_xor_b32 v13, v13, v14")
    k.e("v_lshlrev_b32 v13, 4, v13")
    k.e(f"v_lshl_add_u32 v{vWa}, v12, 10, v13")
    k.e(f"v_add_u32 v{vWb}, {8192-1024}, v{vWa}")
    qstride = 262144 if mode == 'oproj' else 86 * 1024
    k.e(f"s_mul_i32 s{sBo0}, s{sMT}, {2*qstride}")
    k.e(f"s_mul_i32 s{sT}, s{sWv}, {NS*1024}")
    k.e(f"s_add_u32 s{sBo0}, s{sBo0}, s{sT}")
    k.e(f"s_add_u32 s{sBo1}, s{sBo0}, {qstride}")
    k.e(f"s_mul_i32 s{sWo}, s{sWv}, {NS*16384}")
    k.e(f"s_lshl_b32 s{sT}, s{sNT}, 7")
    k.e(f"s_add_u32 s{sWo}, s{sWo}, s{sT}")
    k.e(f"s_lshl_b32 s{sM0}, s{sWv}, 15")
    k.e("s_waitcnt lgkmcnt(0)")
    srd(k, sW, 36, 4096*512*2 if mode == 'oproj' else 1376*512*2)
    boff, bsize = (CTX_OFF, 64*262144) if mode == 'oproj' else (HP_OFF, 64*86*1024)
    k.e(f"s_add_u32 s{sB}, s38, {hex(boff)}")
    k.e(f"s_addc_u32 s{sB+1}, s39, 0")
    k.e(f"s_mov_b32 s{sB+2}, {hex(bsize)}")
    k.e(f"s_mov_b32 s{sB+3}, 0x00020000")
    if ROT:
        k.e(f"s_mov_b32 s{sBb}, s{sBo0}"); k.e(f"s_mov_b32 s{sWb}, s{sWo}")
        if NS == 64: k.e(f"s_lshl_b32 s{sPos}, s{sNT}, 3")
        else:
            k.e(f"s_mul_i32 s{sPos}, s{sNT}, {NS}"); k.e(f"s_lshr_b32 s{sPos}, s{sPos}, 3")
        k.e(f"s_lshl_b32 s{sT}, s{sPos}, 10"); k.e(f"s_add_u32 s{sBo0}, s{sBb}, s{sT}"); k.e(f"s_add_u32 s{sBo1}, s{sBo0}, {qstride}")
        k.e(f"s_lshl_b32 s{sT}, s{sPos}, 14"); k.e(f"s_add_u32 s{sWo}, s{sWb}, s{sT}")
    def group(s):
        r = BR + (s % R) * 8
        its = [f"s_add_u32 m0, s{sM0}, {(s%R)*2048}",
               ('vm', f"buffer_load_dwordx4 v[{r}:{r+3}], v{vL16}, s[{sB}:{sB+3}], s{sBo0} offen{BNT}", ('g', s)),
               ('vm', f"buffer_load_dwordx4 v{vWa}, s[{sW}:{sW+3}], s{sWo} offen lds", ('g', s)),
               ('vm', f"buffer_load_dwordx4 v[{r+4}:{r+7}], v{vL16}, s[{sB}:{sB+3}], s{sBo1} offen{BNT}", ('g', s)),
               ('vm', f"buffer_load_dwordx4 v{vWb}, s[{sW}:{sW+3}], s{sWo} offen offset:1024 lds", ('g', s))]
        if ROT:
            its += [f"s_add_u32 s{sPos}, s{sPos}, 1"]
            if NS == 64: its += [f"s_and_b32 s{sPos}, s{sPos}, 63"]
            else: its += [f"s_cmp_eq_u32 s{sPos}, {NS}", f"s_cselect_b32 s{sPos}, 0, s{sPos}"]
            its += [f"s_lshl_b32 s{sT}, s{sPos}, 10", f"s_add_u32 s{sBo0}, s{sBb}, s{sT}", f"s_add_u32 s{sBo1}, s{sBo0}, {qstride}",
                    f"s_lshl_b32 s{sT}, s{sPos}, 14", f"s_add_u32 s{sWo}, s{sWb}, s{sT}"]
        else:
            its += [f"s_add_u32 s{sBo0}, s{sBo0}, 1024", f"s_add_u32 s{sBo1}, s{sBo1}, 1024", f"s_add_u32 s{sWo}, s{sWo}, 16384"]
        return its
    k.items(group(0)); k.items(group(1))
    srd(k, sWS, 38, WS_SIZE)
    srd(k, sRes, 40, 2048*512*2)
    k.e("v_and_b32 v12, 31, v10")
    k.e("v_lshrrev_b32 v13, 5, v10")
    k.e("v_and_b32 v14, 15, v10")
    k.e("v_lshrrev_b32 v15, 2, v14")
    k.e("v_lshl_add_u32 v15, v13, 2, v15")
    k.e("v_lshlrev_b32 v15, 7, v15")
    k.e("v_bfe_u32 v8, v10, 4, 1")
    k.e("v_lshlrev_b32 v8, 1, v8")
    k.e("v_bfe_u32 v9, v14, 1, 1")
    k.e("v_add_u32 v8, v8, v9")
    k.e("v_lshrrev_b32 v9, 3, v14")
    k.e("v_lshlrev_b32 v9, 2, v9")
    k.e("v_xor_b32 v8, v8, v9")
    k.e("v_lshl_add_u32 v15, v8, 4, v15")
    k.e("v_and_b32 v9, 1, v14")
    k.e("v_lshl_add_u32 v15, v9, 3, v15")
    k.e(f"v_add_u32 v{vR0}, s{sM0}, v15")
    k.e(f"v_xor_b32 v{vR1}, 64, v{vR0}")
    for s in range(2, D): k.items(group(s))
    for r in range(64): k.e(f"v_mov_b32 v{ACC+r}, 0")
    k.e(f"s_lshr_b32 s{sT}, s{sWv}, 1")
    k.e(f"s_and_b32 s{sT2}, s{sWv}, 1")
    k.e(f"s_lshl_b32 s34, s{sMT}, 1")
    k.e(f"s_add_u32 s34, s34, s{sT2}")
    k.e(f"s_lshl_b32 s35, s{sNT}, 1")
    k.e(f"s_add_u32 s35, s35, s{sT}")
    def res_loads():
        its = []
        if mode == 'oproj':
            its += ["v_lshlrev_b32 v14, 10, v12", f"v_lshl_add_u32 v{vX}, v13, 3, v14", f"s_lshl_b32 s42, s34, 15", f"s_lshl_b32 s43, s35, 6", f"s_add_u32 s42, s42, s43"]
            for g in range(4):
                its.append(('vm', f"buffer_load_dwordx2 v[{RES+2*g}:{RES+2*g+1}], v{vX}, s[{sRes}:{sRes+3}], s42 offen offset:{g*16}", 'res'))
        else:
            its += [f"s_lshl_b32 s42, s34, 5", f"s_lshl_b32 s43, s35, 1", f"s_add_u32 s42, s42, s43", f"s_lshl_b32 s42, s42, 10", f"s_add_u32 s42, s42, {hex(HF_OFF)}"]
            for u in range(2):
                its.append(('vm', f"buffer_load_dwordx4 v[{RES+4*u}:{RES+4*u+3}], v{vL16}, s[{sWS}:{sWS+3}], s42 offen offset:{u*1024}", 'res'))
            its += ["v_lshlrev_b32 v14, 10, v12", f"v_lshl_add_u32 v{vX}, v13, 4, v14"]
        return its
    def wf(s, mt): return WF + (s % 2) * 8 + mt * 4
    def wreads(s):
        its = []
        for mt in range(2):
            a = vR0 if mt == 0 else vR1
            r = wf(s, mt); o = (s % R) * 2048
            its.append(('lg', f"ds_read_b64_tr_b16 v[{r}:{r+1}], v{a} offset:{o}", ('w', s)))
            its.append(('lg', f"ds_read_b64_tr_b16 v[{r+2}:{r+3}], v{a} offset:{o+1024}", ('w', s)))
        return its
    stampt()
    def step(s, prefetch, vmn, extra=None):
        if vmn is not None:
            k.e(f"s_waitcnt vmcnt({vmn})")
            k.items(wreads(s + 1))
            k.e("s_waitcnt lgkmcnt(4)")
        else:
            k.e("s_waitcnt lgkmcnt(0)")
        r = BR + (s % R) * 8
        pf = groups(group(s + D)) if prefetch else []
        n = 0
        for mt in range(2):
            for a in range(2):
                acc = ACC + (mt * 2 + a) * 16
                k.e(f"v_mfma_f32_32x32x16_bf16 v[{acc}:{acc+15}], v[{wf(s,mt)}:{wf(s,mt)+3}], v[{r+4*a}:{r+4*a+3}], v[{acc}:{acc+15}]")
                if n < len(pf): k.items(pf[n])
                n += 1
        if len(pf) > 4:
            for g_ in pf[4:]: k.items(g_)
        if extra: k.items(extra)
    k.e(f"s_waitcnt vmcnt({(D-1)*GS})")
    k.items(wreads(0))
    VM = (D - 2) * GS
    npf = NS - D
    if mode == 'oproj':
        k.e(f"s_mov_b32 s{sCnt}, 3")
        k.e(".p2align 6")
        k.label(f"L_{L}_loop")
        for s in range(16): step(s, True, VM)
        k.e(f"s_sub_u32 s{sCnt}, s{sCnt}, 1")
        k.e(f"s_cmp_lg_u32 s{sCnt}, 0")
        k.e(f"s_cbranch_scc1 L_{L}_loop")
        s0 = 48
    else: s0 = 0
    resdone = False
    for s in range(s0, NS):
        if s < npf: step(s, True, VM)
        else:
            rem = NS - 1 - (s + 1)
            ex = None; add = 0
            if not resdone: ex = res_loads(); resdone = True
            else: add = 4 if mode == 'oproj' else 2
            step(s, False, (rem * GS + add) if s + 1 < NS else None, ex)
    stampt()
    k.e("s_nop 7"); k.e("s_nop 3")
    k.e(f"v_add_u32 v8, s{sM0}, v{vL16}")
    for t in range(4):
        for g in range(4):
            k.e(f"ds_write_b128 v8, v[{ACC+16*t+4*g}:{ACC+16*t+4*g+3}] offset:{t*4096+g*1024}")
    k.e(f"s_lshl_b32 s{sT}, s{sWv}, 12")
    k.e(f"v_add_u32 v8, s{sT}, v{vL16}")
    k.e("v_add_u32 v9, 65536, v8")
    k.e("s_waitcnt lgkmcnt(0)")
    k.e("s_barrier")
    Rr = BR
    for w in range(4):
        for g in range(4):
            k.e(f"ds_read_b128 v[{Rr+16*w+4*g}:{Rr+16*w+4*g+3}], v{8 if w < 2 else 9} offset:{(w%2)*32768+g*1024}")
    k.e("s_waitcnt lgkmcnt(8)")
    for r in range(16): k.e(f"v_add_f32 v{Rr+r}, v{Rr+r}, v{Rr+16+r}")
    k.e("s_waitcnt lgkmcnt(0)")
    for r in range(16): k.e(f"v_add_f32 v{Rr+32+r}, v{Rr+32+r}, v{Rr+48+r}")
    for r in range(16): k.e(f"v_add_f32 v{Rr+r}, v{Rr+r}, v{Rr+32+r}")
    k.e("s_waitcnt vmcnt(0)")
    PK = ACC
    for j in range(8): k.e(f"v_cvt_pk_bf16_f32 v{PK+j}, v{Rr+2*j}, v{Rr+2*j+1}")
    for j in range(8):
        k.e(f"v_lshlrev_b32 v{Rr+2*j}, 16, v{PK+j}")
        k.e(f"v_and_b32 v{Rr+2*j+1}, 0xffff0000, v{PK+j}")
        k.e(f"v_lshlrev_b32 v{Rr+16+2*j}, 16, v{RES+j}")
        k.e(f"v_and_b32 v{Rr+16+2*j+1}, 0xffff0000, v{RES+j}")
    for r in range(16): k.e(f"v_add_f32 v{Rr+r}, v{Rr+r}, v{Rr+16+r}")
    for j in range(8): k.e(f"v_cvt_pk_bf16_f32 v{PK+j}, v{Rr+2*j}, v{Rr+2*j+1}")
    if mode == 'oproj':
        k.e(f"s_lshl_b32 s42, s34, 5")
        k.e(f"s_lshl_b32 s43, s35, 1")
        k.e(f"s_add_u32 s42, s42, s43")
        k.e(f"s_lshl_b32 s42, s42, 10")
        k.e(f"s_add_u32 s42, s42, {hex(HF_OFF)}")
        for u in range(2):
            k.e(f"buffer_store_dwordx4 v[{PK+4*u}:{PK+4*u+3}], v{vL16}, s[{sWS}:{sWS+3}], s42 offen offset:{u*1024} sc1")
        for j in range(8):
            k.e(f"v_lshlrev_b32 v{Rr+2*j}, 16, v{PK+j}")
            k.e(f"v_and_b32 v{Rr+2*j+1}, 0xffff0000, v{PK+j}")
        k.e(f"v_add_f32 v{T}, v{Rr}, v{Rr+1}")
        k.e(f"v_mul_f32 v{T+1}, v{Rr}, v{Rr}")
        k.e(f"v_fmac_f32 v{T+1}, v{Rr+1}, v{Rr+1}")
        for r in range(2, 16):
            k.e(f"v_add_f32 v{T}, v{T}, v{Rr+r}")
            k.e(f"v_fmac_f32 v{T+1}, v{Rr+r}, v{Rr+r}")
        k.e(f"v_mov_b32 v{T+2}, v{T}")
        k.e(f"v_mov_b32 v{T+3}, v{T+1}")
        k.e("s_nop 1")
        k.e(f"v_permlane32_swap_b32 v{T}, v{T+2}")
        k.e(f"v_permlane32_swap_b32 v{T+1}, v{T+3}")
        k.e("s_nop 1")
        k.e(f"v_add_f32 v{T}, v{T}, v{T+2}")
        k.e(f"v_add_f32 v{T+1}, v{T+1}, v{T+3}")
        k.e(f"v_lshlrev_b32 v8, 7, v12")
        k.e(f"s_lshl_b32 s42, s34, 12")
        k.e(f"s_lshl_b32 s43, s35, 3")
        k.e(f"s_add_u32 s42, s42, s43")
        k.e(f"s_add_u32 s42, s42, {hex(ST_OFF)}")
        k.e(f"buffer_store_dwordx2 v[{T}:{T+1}], v8, s[{sWS}:{sWS+3}], s42 offen sc1")
    else:
        k.e("s_nop 1")
        for u in range(2):
            k.e(f"v_permlane32_swap_b32 v{PK+4*u}, v{PK+4*u+2}")
            k.e(f"v_permlane32_swap_b32 v{PK+4*u+1}, v{PK+4*u+3}")
        k.e(f"s_lshl_b32 s42, s34, 15")
        k.e(f"s_lshl_b32 s43, s35, 6")
        k.e(f"s_add_u32 s42, s42, s43")
        for u in range(2):
            k.e(f"buffer_store_dwordx4 v[{PK+4*u}:{PK+4*u+3}], v{vX}, s[{sRes}:{sRes+3}], s42 offen offset:{u*32}")
    if prof:
        k.e("s_waitcnt vmcnt(0)")
        k.e("s_memrealtime s[100:101]")
        k.e("s_waitcnt lgkmcnt(0)")
        prof_store(k, kidx, sWS, sWv, 98, 100)
        if prof >= 2:
            stampt(); prof_dump(k, kidx, sWS, sWv, nst[0])
    k.label(f"L_{L}_end")
    k.e("s_endpgm")
    return k

def ffn1(kidx, prof):
    k = K("ffn1"); L = "ffn1"
    vL16 = 1
    HB = 128
    G = 16; U = 64
    NR = 12
    PF = 6
    sWS, sWG, sWU = 4, 8, 12
    sWv, sRB, sCB, sT, sT2, sQT = 24, 25, 26, 27, 28, 29
    nst = [0]
    def stampt():
        if prof >= 2:
            r = 66 + 2 * nst[0]; nst[0] += 1
            k.e(f"s_memtime s[{r}:{r+1}]"); k.e("s_waitcnt lgkmcnt(0)")
    k.e("s_lshr_b32 s28, s2, 3")
    k.e("s_cmp_ge_u32 s28, 30")
    k.e(f"s_cbranch_scc1 L_{L}_end")
    if prof: k.e("s_memrealtime s[98:99]")
    stampt()
    k.e(f"s_load_dwordx4 s[36:39], s[0:1], {ARG['wg']}")
    k.e(f"s_load_dwordx2 s[40:41], s[0:1], {ARG['ws']}")
    k.e("v_and_b32 v10, 63, v0")
    k.e("v_lshrrev_b32 v11, 6, v0")
    k.e(f"v_lshlrev_b32 v{vL16}, 4, v10")
    k.e(f"v_readfirstlane_b32 s{sWv}, v11")
    k.e(f"s_and_b32 s{sT}, s2, 7")
    k.e(f"s_lshl_b32 s{sRB}, s{sT}, 1")
    k.e(f"s_and_b32 s{sT}, s28, 1")
    k.e(f"s_add_u32 s{sRB}, s{sRB}, s{sT}")
    k.e(f"s_lshr_b32 s{sCB}, s28, 1")
    k.e(f"s_lshl_b32 s{sQT}, s{sRB}, 2")
    k.e(f"s_add_u32 s{sQT}, s{sQT}, s{sWv}")
    v64, v32 = 5, 6
    k.e("v_lshrrev_b32 v12, 3, v10")
    k.e("v_and_b32 v13, 7, v10")
    k.e("v_bfe_u32 v14, v10, 4, 1")
    k.e("v_lshlrev_b32 v14, 2, v14")
    k.e("v_xor_b32 v13, v13, v14")
    k.e("v_lshlrev_b32 v13, 4, v13")
    k.e("v_mul_u32_u24 v12, 2752, v12")
    k.e(f"v_add_u32 v{v64}, v12, v13")
    k.e("v_lshrrev_b32 v12, 2, v10")
    k.e("v_and_b32 v13, 3, v10")
    k.e("v_lshlrev_b32 v13, 4, v13")
    k.e("v_mul_u32_u24 v12, 2752, v12")
    k.e(f"v_add_u32 v{v32}, v12, v13")
    k.e(f"v_add_u32 v{v32}, 128, v{v32}")
    SLOT = [0, 49152, 98304, 0]
    k.e(f"s_mul_i32 s30, s{sCB}, 192")
    k.e(f"s_mul_i32 s31, s{sWv}, {32*2752}")
    k.e(f"s_add_u32 s30, s30, s31")
    k.e(f"s_lshl_b32 s31, s{sWv}, 12")
    k.e(f"s_lshl_b32 s32, s{sWv}, 11")
    k.e("v_and_b32 v12, 31, v10")
    k.e("v_lshrrev_b32 v13, 5, v10")
    k.e("v_lshlrev_b32 v14, 7, v12")
    k.e("v_lshl_add_u32 v14, v13, 6, v14")
    k.e(f"s_lshl_b32 s{sT2}, s{sQT}, 12")
    k.e(f"s_add_u32 s{sT2}, s{sT2}, {hex(ST_OFF)}")
    k.e(f"s_lshl_b32 s33, s{sQT}, 15")
    k.e(f"s_add_u32 s33, s33, {hex(HF_OFF)}")
    k.e("s_waitcnt lgkmcnt(0)")
    srd(k, sWS, 40, WS_SIZE)
    srd(k, sWG, 36, 512*1376*2)
    srd(k, sWU, 38, 512*1376*2)
    def dma_chunk(c):
        its = []
        for mi, srdw in enumerate((sWG, sWU)):
            base = SLOT[c] + mi * 24576
            for j in range(4):
                its += [f"s_add_u32 m0, s31, {base + j*1024}", f"s_add_u32 s{sT}, s30, {c*128*2752 + j*8*2752}",
                        ('vm', f"buffer_load_dwordx4 v{v64}, s[{srdw}:{srdw+3}], s{sT} offen lds", ('W', c))]
            for j in range(2):
                its += [f"s_add_u32 m0, s32, {base + 16384 + j*1024}", f"s_add_u32 s{sT}, s30, {c*128*2752 + j*16*2752}",
                        ('vm', f"buffer_load_dwordx4 v{v32}, s[{srdw}:{srdw+3}], s{sT} offen lds", ('W', c))]
        return its
    def hload(s):
        its = []
        if s % 4 == 0 and s: its.append(f"s_add_u32 s33, s33, 4096")
        off = f" offset:{(s%4)*1024}" if s % 4 else ""
        its.append(('vm', f"buffer_load_dwordx4 v[{HB+4*s}:{HB+4*s+3}], v{vL16}, s[{sWS}:{sWS+3}], s33 offen{off}", ('h', s)))
        return its
    for j in range(4):
        k.vmem(f"buffer_load_dwordx4 v[{G+4*j}:{G+4*j+3}], v14, s[{sWS}:{sWS+3}], s{sT2} offen offset:{16*j}", 'st')
    for s in range(4): k.items(hload(s))
    k.items(dma_chunk(0))
    vR0, vR1, vR2 = 7, 8, 9
    k.e("v_and_b32 v14, 15, v10")
    k.e("v_lshrrev_b32 v15, 2, v14")
    k.e("v_lshl_add_u32 v15, v13, 2, v15")
    k.e("v_bfe_u32 v2, v10, 4, 1")
    k.e("v_lshlrev_b32 v3, 1, v2")
    k.e("v_bfe_u32 v4, v14, 1, 1")
    k.e("v_add_u32 v3, v3, v4")
    k.e("v_lshrrev_b32 v4, 3, v14")
    k.e("v_lshlrev_b32 v4, 2, v4")
    k.e("v_xor_b32 v3, v3, v4")
    k.e("v_lshlrev_b32 v3, 4, v3")
    k.e("v_and_b32 v4, 1, v14")
    k.e("v_lshl_add_u32 v3, v4, 3, v3")
    k.e(f"v_lshl_add_u32 v{vR0}, v15, 7, v3")
    k.e(f"v_xor_b32 v{vR1}, 64, v{vR0}")
    k.e("v_and_b32 v4, 3, v14")
    k.e("v_lshlrev_b32 v4, 3, v4")
    k.e("v_lshl_add_u32 v4, v2, 5, v4")
    k.e(f"v_lshl_add_u32 v{vR2}, v15, 6, v4")
    for s in range(4, 8): k.items(hload(s))
    k.wait_vm('st')
    k.e(f"v_add_f32 v2, v{G}, v{G+2}")
    k.e(f"v_add_f32 v3, v{G+1}, v{G+3}")
    for j in range(2, 8):
        k.e(f"v_add_f32 v2, v2, v{G+2*j}")
        k.e(f"v_add_f32 v3, v3, v{G+2*j+1}")
    k.e("v_mov_b32 v4, v2"); k.e("v_mov_b32 v11, v3"); k.e("s_nop 1")
    k.e("v_permlane32_swap_b32 v2, v4"); k.e("v_permlane32_swap_b32 v3, v11"); k.e("s_nop 1")
    k.e("v_add_f32 v2, v2, v4"); k.e("v_add_f32 v3, v3, v11")
    k.e("v_mul_f32 v2, 0x3b000000, v2")
    k.e("v_mul_f32 v3, 0x3b000000, v3")
    k.e("v_fma_f32 v3, -v2, v2, v3")
    k.e("v_max_f32 v3, 0, v3")
    k.e("v_cvt_pk_bf16_f32 v2, v2, v2"); k.e("v_cvt_pk_bf16_f32 v3, v3, v3")
    k.e("v_lshlrev_b32 v2, 16, v2"); k.e("v_lshlrev_b32 v3, 16, v3")
    k.e("v_add_f32 v3, 0x3727c5ac, v3")
    k.e("v_cvt_pk_bf16_f32 v3, v3, v3"); k.e("v_lshlrev_b32 v3, 16, v3")
    k.e("v_sqrt_f32 v3, v3"); k.e("s_nop 0")
    k.e("v_cvt_pk_bf16_f32 v3, v3, v3"); k.e("v_lshlrev_b32 v3, 16, v3")
    k.e("v_rcp_f32 v3, v3"); k.e("s_nop 0")
    k.e("v_mul_f32 v4, v2, v3")
    k.e("v_sub_f32 v4, 0, v4")
    vAa, vBb = 3, 4
    def norm(s):
        its = []
        for j in range(4):
            r = HB + 4 * s + j
            t0, t1 = (12, 13) if j % 2 == 0 else (14, 15)
            its += [f"v_lshlrev_b32 v{t0}, 16, v{r}", f"v_and_b32 v{t1}, 0xffff0000, v{r}",
                    f"v_fma_f32 v{t0}, v{t0}, v{vAa}, v{vBb}", f"v_fma_f32 v{t1}, v{t1}, v{vAa}, v{vBb}",
                    f"v_cvt_pk_bf16_f32 v{r}, v{t0}, v{t1}"]
        return its
    def fr(gidx): return (gidx % NR) * 4
    def fread(gidx):
        s, f = gidx // 6, gidx % 6
        c, sp = s // 8, s % 8
        mi, ft = f % 2, f // 2
        base = mi * 24576
        if ft < 2: a, o, second = (vR0 if ft == 0 else vR1), base + sp * 2048, 1024
        else: a, o, second = vR2, base + 16384 + sp * 1024, 512
        r = fr(gidx)
        return [('lg', f"ds_read_b64_tr_b16 a[{r}:{r+1}], v{a} offset:{o}", ('f', gidx)),
                ('lg', f"ds_read_b64_tr_b16 a[{r+2}:{r+3}], v{a} offset:{o+second}", ('f', gidx))]
    def setbase(c):
        d = SLOT[c] - (SLOT[c-1] if c else 0)
        if d == 0: return []
        return [f"v_add_u32 v{r}, {hex(d & 0xffffffff)}, v{r}" for r in (vR0, vR1, vR2)]
    stampt()
    k.wait_vm([('h', 1)])
    k.items(norm(0)); k.items(norm(1))
    k.wait_vm([('W', 0)])
    k.e("s_barrier")
    for g in range(PF): k.items(fread(g))
    NG = 32 * 6
    extra = {}
    def add(g, its): extra.setdefault(g, []).extend(its)
    for j, gg in enumerate(groups(dma_chunk(1))): add(j, gg)
    for s in range(8, 16): add(12 + (s - 8), hload(s))
    for j, gg in enumerate(groups(dma_chunk(2))): add(24 + j * 2, gg)
    for s in range(16, 32): add(50 + (s - 16) * 2, hload(s))
    for gidx in range(NG):
        s, f = gidx // 6, gidx % 6
        mi, ft = f % 2, f // 2
        pre = []; post = []
        nxt = gidx + PF
        if nxt < NG and nxt % 48 == 0:
            cn = nxt // 48
            pre.append(('wvm', [('W', cn)]))
            pre.append("s_barrier")
            pre += setbase(cn)
            if cn == 2:
                for j, gg in enumerate(groups(dma_chunk(3))): add(gidx + 1 + j, gg)
        if f == 0 and s + 2 < 32 and (s + 2) % 2 == 0: pre.append(('wvm', [('h', s + 3 if s + 3 < 32 else s + 2)]))
        if gidx % 3 == 0: pre.append(('wlg', ('f', min(gidx + 2, NG - 1))))
        if nxt < NG: post += fread(nxt)
        if s + 2 < 32:
            nm = norm(s + 2)
            cut = [0, 3, 7, 10, 13, 17, 20]
            post += nm[cut[f]:cut[f+1]]
        post += extra.get(gidx, [])
        k.items(pre)
        acc = (G if mi == 0 else U) + 16 * ft
        cc = "0" if s == 0 else f"v[{acc}:{acc+15}]"
        k.e(f"v_mfma_f32_32x32x16_bf16 v[{acc}:{acc+15}], a[{fr(gidx)}:{fr(gidx)+3}], v[{HB+4*s}:{HB+4*s+3}], {cc}")
        k.items(post)
    stampt()
    k.e("s_nop 7"); k.e("s_nop 3")
    k.e(f"s_mul_i32 s{sT}, s{sQT}, 86")
    k.e(f"s_mul_i32 s{sT2}, s{sCB}, 6")
    k.e(f"s_add_u32 s{sT}, s{sT}, s{sT2}")
    k.e(f"s_lshl_b32 s{sT}, s{sT}, 10")
    k.e(f"s_add_u32 s{sT}, s{sT}, {hex(HP_OFF)}")
    for ft in range(3):
        if ft == 1:
            k.e(f"s_cmp_eq_u32 s{sCB}, 14")
            k.e(f"s_cbranch_scc1 L_{L}_fin")
        for r in range(16):
            k.e(f"v_max_f32 v{G+16*ft+r}, 0, v{G+16*ft+r}")
            k.e(f"v_mul_f32 v{G+16*ft+r}, v{G+16*ft+r}, v{U+16*ft+r}")
        for u in range(2):
            pk = HB + 8 * ft + 4 * u
            for j in range(4): k.e(f"v_cvt_pk_bf16_f32 v{pk+j}, v{G+16*ft+8*u+2*j}, v{G+16*ft+8*u+2*j+1}")
            fs = 2 * ft + u
            if fs == 4: k.e(f"s_add_u32 s{sT}, s{sT}, 4096")
            off = f" offset:{(fs%4)*1024}" if fs % 4 else ""
            k.e(f"buffer_store_dwordx4 v[{pk}:{pk+3}], v{vL16}, s[{sWS}:{sWS+3}], s{sT} offen{off} sc1")
    k.label(f"L_{L}_fin")
    if prof:
        k.e("s_waitcnt vmcnt(0)")
        k.e("s_memrealtime s[100:101]")
        k.e("s_waitcnt lgkmcnt(0)")
        prof_store(k, kidx, sWS, sWv, 98, 100)
        if prof >= 2:
            stampt(); prof_dump(k, kidx, sWS, sWv, nst[0])
    k.label(f"L_{L}_end")
    k.e("s_endpgm")
    return k

def kernels(prof):
    out = []
    for nm, kk, nv, acc, thr, lds in (("oproj_kernel", skinny(2, "oproj", 'oproj', prof), 240, 240, 256, 131072),
                                 ("ffn1_kernel", ffn1(3, prof), 304, 256, 256, 147456),
                                 ("ffn2_kernel", skinny(4, "ffn2", 'down', prof), 240, 240, 256, 131072)):
        errs = check_hazards(kk.lines, nm)
        assert not errs, errs[:8]
        out.append((nm, kk, nv, acc, thr, lds))
    return out
```

```python
class It:
    def __init__(self, name, cost, text, deps=(), earliest=0, latest=None, prio=0):
        self.name, self.cost, self.text = name, cost, text
        self.deps = list(deps)
        self.earliest, self.latest, self.prio = earliest, latest, prio
def schedule(budgets, fixed_counts, items, verbose=False):
    n = len(budgets)
    out = [[] for _ in range(n)]
    pos = {}
    cur = 0
    rem = list(items)
    used = [0] * n
    for g in range(n):
        cur += fixed_counts[g]
        while True:
            cands = []
            for it in rem:
                if it.earliest > g: continue
                ok = True
                for d, sep in it.deps:
                    if d not in pos or cur - pos[d] - 1 < sep: ok = False; break
                if not ok: continue
                forced = (it.latest is not None and it.latest <= g) or g == n - 1
                if used[g] + it.cost <= budgets[g] or forced: cands.append((0 if forced and used[g] + it.cost > budgets[g] else 1, it))
            if not cands:
                if g == n - 1 and rem:
                    out[g].append("s_nop 0"); cur += 1; used[g] += 4;
                    if used[g] > 400: raise RuntimeError("sched stuck " + str([r.name for r in rem]))
                    continue
                break
            fit = [c for f, c in cands if f == 1]
            pick = None
            if fit: pick = max(fit, key=lambda it: (it.prio, -items.index(it)))
            else: pick = cands[0][1]
            out[g].append(pick.text); pos[pick.name] = cur; cur += 1; used[g] += pick.cost; rem.remove(pick)
    assert not rem, [r.name for r in rem]
    if verbose: print("gap use:", used, "budget", budgets)
    return out
```
